```python
import torch

def _softmax(x, axis=-1):
    return torch.softmax(x, dim=axis)
def _gelu(x):
    return torch.nn.functional.gelu(x, approximate="tanh")
def _silu(x):
    return torch.nn.functional.silu(x)
def _sigmoid(x):
    return torch.sigmoid(x)
def _layernorm(x, axis=-1, eps=1e-5):
    m = x.mean(dim=axis, keepdim=True)
    v = x.var(dim=axis, keepdim=True, unbiased=False)
    return (x - m) / torch.sqrt(v + eps)
def _scatter_add(tgt, idx, src, axis=0):
    return tgt.clone().index_add_(axis, idx, src)
def _segment_sum(src, seg, n):
    out = torch.zeros((n,) + src.shape[1:], dtype=src.dtype)
    return out.index_add_(0, seg, src)
def _pad(x, pw):
    flat = tuple(v for pair in reversed(pw) for v in pair)
    return torch.nn.functional.pad(x, flat)

kernel_name = 'sequential_preLN__softmax_full_mha__glu_gated_reglu__prompt'

def setup_inputs():

    _w = (lambda a: (lambda t: t.to(torch.bfloat16) if t.is_floating_point() else t)(torch.as_tensor(a)))
    def _A_setup():
        B, S, D = 1, 2048, 640
        return {
            "x": _w((lambda *s: torch.randn(*s, dtype=torch.bfloat16) * 0.05)(B, S, D)),
            "wqkv": _w((lambda *s: torch.randn(*s, dtype=torch.bfloat16) * 0.05)(D, 3 * D)),
            "wo": _w((lambda *s: torch.randn(*s, dtype=torch.bfloat16) * 0.05)(D, D)),
        }
    _A_in = _A_setup()

    def _B_setup():
        B, S, D, F = 1, 2048, 640, 1536
        return {
            "x": _w((lambda *s: torch.randn(*s, dtype=torch.bfloat16) * 0.05)(B, S, D)),
            "W_gate": _w((lambda *s: torch.randn(*s, dtype=torch.bfloat16) * 0.4)(D, F) * (2.0 / D) ** 0.5),
            "W_up": _w((lambda *s: torch.randn(*s, dtype=torch.bfloat16) * 0.4)(D, F) * (2.0 / D) ** 0.5),
            "W_down": _w((lambda *s: torch.randn(*s, dtype=torch.bfloat16) * 0.4)(F, D) * (1.0 / F) ** 0.5),
        }
    _B_in = _B_setup()

    return {
        "A_x": _A_in["x"],
        "A_wqkv": _A_in["wqkv"],
        "A_wo": _A_in["wo"],
        "B_x": _B_in["x"],
        "B_W_gate": _B_in["W_gate"],
        "B_W_up": _B_in["W_up"],
        "B_W_down": _B_in["W_down"],
    }

def reference(A_x, A_wqkv, A_wo, B_x, B_W_gate, B_W_up, B_W_down):
    def _A_ref(x, wqkv, wo):
        B, S, D = x.shape
        H = 32; Dh = D // H
        qkv = (lambda x, *d: x.permute(*d))((x @ wqkv).reshape(B, S, 3, H, Dh), 2, 0, 3, 1, 4)
        q, k, v = qkv[0], qkv[1], qkv[2]
        scale = Dh ** -0.5
        scores = torch.einsum("bhqd,bhkd->bhqk", q, k) * scale
        p = _softmax(scores, axis=-1)
        o = torch.einsum("bhqk,bhkd->bhqd", p, v)
        return (lambda x, *d: x.permute(*d))(o, 0, 2, 1, 3).reshape(B, S, D) @ wo

    def _B_ref(x, W_gate, W_up, W_down):
        gate = torch.einsum("bsd,df->bsf", x, W_gate)
        up = torch.einsum("bsd,df->bsf", x, W_up)
        gate = gate * (lambda x, dt: x.to(dt))(gate > 0, gate.dtype)
        h = gate * up
        return torch.einsum("bsf,fd->bsd", h, W_down)

    x = A_x
    h = x + _A_ref(_layernorm(x, axis=-1), A_wqkv, A_wo)
    h2 = h + _B_ref(_layernorm(h, axis=-1), B_W_gate, B_W_up, B_W_down)
    return h2
```

```python
import re, sys

class Asm:
    def __init__(self):
        self.lines = []
    def __call__(self, s, *a):
        for l in s.split("\n"):
            l = l.strip()
            if l:
                if l.endswith(":") and " " not in l:
                    self.lines.append(l)
                else:
                    self.lines.append("    " + l)
    STAMPS = False
    kidx = 0
    def stamp(self, i):
        if self.STAMPS == "rt": self(f"s_memrealtime s[{64+2*i}:{65+2*i}]")
        elif self.STAMPS == "cyc": self(f"s_memtime s[{64+2*i}:{65+2*i}]")
        elif self.STAMPS:
            self(f"s_memrealtime s[{64+2*i}:{65+2*i}]")
            self(f"s_memtime s[{80+2*i}:{81+2*i}]")
    def cstamp(self, i):
        if self.STAMPS: self(f"s_memtime s[{64+2*i}:{65+2*i}]")
    def endpgm(self, waitstore=True):
        if self.STAMPS:
            self("s_mov_b64 exec, -1")
            if waitstore: self("s_waitcnt vmcnt(0)")
            self.stamp(7)
            self("""
            s_load_dwordx2 s[60:61], s[0:1], 72
            s_waitcnt lgkmcnt(0)
            s_add_u32 s60, s60, 0x2000000
            s_addc_u32 s61, s61, 0
            s_mov_b32 s62, 0x1000000
            s_mov_b32 s63, 0x00020000
            s_lshl_b32 s58, s2, 3
            s_add_u32 s58, s58, s42
            s_lshl_b32 s58, s58, 6
            """)
            self(f"s_add_u32 s58, s58, {self.kidx*131072}")
            self("v_mov_b32 v1, s58")
            self("s_mov_b64 exec, 1")
            for i in range(16):
                self(f"v_mov_b32 v2, s{64+2*i}")
                self(f"buffer_store_dword v2, v1, s[60:63], 0 offen offset:{4*i}")
        self("s_endpgm")
    def label(self, l): self.lines.append(l + ":")
    def c(self, s): self.lines.append("    ; " + s)
    def raw(self, s): self.lines.append(s)
    def text(self): return "\n".join(self.lines) + "\n"

def v(a, n=1): return f"v{a}" if n == 1 else f"v[{a}:{a+n-1}]"
def a(x, n=1): return f"a{x}" if n == 1 else f"a[{x}:{x+n-1}]"
def s(x, n=1): return f"s{x}" if n == 1 else f"s[{x}:{x+n-1}]"

class Alloc:
    def __init__(self, start, limit, name="v"):
        self.p = start; self.limit = limit; self.name = name; self.hi = start
    def get(self, n=1, align=None):
        if align is None: align = 1 if n == 1 else (2 if self.name != "s" else (2 if n == 2 else 4))
        self.p = (self.p + align - 1) // align * align
        r = self.p; self.p += n
        assert self.p <= self.limit, f"out of {self.name} regs: {self.p} > {self.limit}"
        self.hi = max(self.hi, self.p)
        return r
    def mark(self): return self.p
    def reset(self, m): self.p = m

REG = re.compile(r"^(-|\|)?(abs\()?([vas])(\d+|\[(\d+):(\d+)\])\)?\|?$")
def regs_of(tok):
    tok = tok.strip()
    if tok in ("vcc",): return {"vcc"}
    if tok in ("vcc_lo", "vcc_hi"): return {"vcc"}
    if tok in ("exec", "exec_lo", "exec_hi"): return {"exec"}
    if tok == "m0": return {"m0"}
    if tok == "scc": return {"scc"}
    m = REG.match(tok)
    if not m: return set()
    k = m.group(3)
    if m.group(5) is not None:
        return {f"{k}{i}" for i in range(int(m.group(5)), int(m.group(6)) + 1)}
    return {f"{k}{m.group(4)}"}

TRANS = ("v_exp_f32", "v_log_f32", "v_rcp_f32", "v_rsq_f32", "v_sqrt_f32", "v_sin_f32", "v_cos_f32", "v_rcp_iflag_f32")
def mfma_passes(op):
    if "32x32x4_2b" in op: return 16
    if "32x32" in op: return 8
    if "16x16" in op: return 4
    raise Exception("unknown mfma " + op)

class Ins:
    def __init__(self, text, lineno):
        self.text = text; self.lineno = lineno
        t = text.split(";")[0].strip()
        parts = t.split(None, 1)
        self.op = parts[0]
        rest = parts[1] if len(parts) > 1 else ""
        ops = [x.strip() for x in rest.split(",")] if rest else []
        self.mods = ""
        if ops:
            lp = ops[-1].split(None, 1)
            j = []
            depth = 0; cur = ""
            for ch in rest:
                if ch == "[": depth += 1
                if ch == "]": depth -= 1
                if ch == "," and depth == 0:
                    j.append(cur.strip()); cur = ""
                else: cur += ch
            j.append(cur.strip())
            ops = j
            lp = ops[-1].split(None, 1)
            ops[-1] = lp[0]
            if len(lp) > 1: self.mods = lp[1]
        self.ops = ops
        op = self.op
        self.dst = set(); self.src = set(); self.srcC = set(); self.srcAB = set()
        self.cls = None; self.passes = 0; self.nops = 1
        self.storedata = set(); self.wide = False; self.lds_dma = False
        R = [regs_of(o) for o in ops]
        if op.startswith("v_mfma") or op.startswith("v_smfmac"):
            self.cls = "mfma"; self.passes = mfma_passes(op)
            self.dst = R[0]; self.srcAB = R[1] | R[2]
            if op.startswith("v_smfmac"):
                self.srcC = set(R[0]); self.srcAB |= R[3]
            else:
                self.srcC = R[3]
            self.src = self.srcAB | self.srcC
        elif op.startswith("v_"):
            self.cls = "valu"
            base = op.replace("_e32", "").replace("_e64", "").replace("_dpp", "").replace("_sdwa", "")
            self.base = base
            if base.startswith("v_cmp"):
                self.dst = R[0]; self.src = set().union(*R[1:])
                if base.startswith("v_cmpx"): self.dst |= {"exec"}
            elif base in ("v_readfirstlane_b32", "v_readlane_b32"):
                self.dst = R[0]; self.src = set().union(*R[1:])
            elif base.startswith("v_permlane") and "swap" in base:
                self.dst = R[0] | R[1]; self.src = R[0] | R[1]
            elif base in ("v_add_co_u32", "v_sub_co_u32", "v_addc_co_u32", "v_subb_co_u32", "v_mad_u64_u32", "v_div_scale_f32"):
                self.dst = R[0] | R[1]; self.src = set().union(*R[2:])
            elif base == "v_nop":
                pass
            else:
                self.dst = R[0]; self.src = set().union(*R[1:]) if len(R) > 1 else set()
                if base in ("v_fmac_f32", "v_dot2c_f32_bf16", "v_writelane_b32", "v_pk_fmac_f16") or "_dpp" in op or "dpp" in self.mods or "row_" in self.mods or "quad_perm" in self.mods or "UNUSED_PRESERVE" in self.mods:
                    self.src |= R[0]
            self.trans = base in TRANS
            self.dot = base.startswith("v_dot")
            self.dpp = ("_dpp" in op) or ("row_" in self.mods) or ("quad_perm" in self.mods)
        elif op.startswith("ds_"):
            self.cls = "ds"
            if op.startswith("ds_read") or op.startswith("ds_bpermute") or op.startswith("ds_swizzle") or op.startswith("ds_permute") or "_rtn" in op:
                self.dst = R[0]; self.src = set().union(*R[1:])
            else:
                self.src = set().union(*R)
        elif op.startswith("buffer_") or op.startswith("global_"):
            self.cls = "vmem"
            if op in ("buffer_wbl2", "buffer_inv"):
                pass
            elif "lds" in self.mods.split() or op.startswith("global_load_lds"):
                self.lds_dma = True; self.src = set().union(*R) | {"m0"}
            elif "_load" in op:
                self.dst = R[0]; self.src = set().union(*R[1:])
            elif "_store" in op:
                self.src = set().union(*R)
                self.storedata = R[0] if op.startswith("buffer_") else R[1]
                self.wide = op.endswith("x3") or op.endswith("x4")
            elif "_atomic" in op:
                self.src = set().union(*R)
                if "sc0" in self.mods.split(): self.dst = R[0]
            else: raise Exception("vmem? " + text)
        elif op.startswith("s_"):
            self.cls = "salu"
            if op == "s_nop":
                self.nops = int(ops[0], 0) + 1
            elif op.startswith("s_load") or op.startswith("s_buffer_load") or op in ("s_memtime", "s_memrealtime"):
                self.cls = "smem"; self.dst = R[0]; self.src = set().union(*R[1:]) if len(R) > 1 else set()
            elif op in ("s_waitcnt", "s_barrier", "s_endpgm", "s_branch", "s_setprio", "s_sleep") or op.startswith("s_cbranch"):
                pass
            elif op.startswith("s_cmp") or op.startswith("s_bitcmp"):
                self.src = set().union(*R); self.dst = {"scc"}
            elif "saveexec" in op:
                self.dst = R[0] | {"exec", "scc"}; self.src = R[1] | {"exec"}
            else:
                self.dst = R[0]; self.src = set().union(*R[1:]) if len(R) > 1 else set()
        else:
            raise Exception("unknown instr: " + text)

_nc = {}
def need(p, c):
    k = (id(p), id(c))
    r = _nc.get(k)
    if r is None:
        r = _need(p, c); _nc[k] = r
    return r
def _need(p, c):
    n = 0
    pv = {r for r in p.dst if r[0] in "va" and r not in ("vcc",)}
    ps = {r for r in p.dst if r[0] == "s" or r == "vcc"}
    ps.discard("scc")
    if p.cls == "valu":
        if c.cls == "mfma" and (pv & c.src):
            n = max(n, 3 if p.dot else 2)
        if c.cls == "vmem" and (ps & c.src): n = max(n, 5)
        if c.cls == "valu":
            if ps & c.src: n = max(n, 4 if c.base in ("v_readlane_b32", "v_writelane_b32") else 2)
            if c.base in ("v_cndmask_b32", "v_addc_co_u32", "v_subb_co_u32") and "vcc" in ps and "vcc" in c.src: n = max(n, 2)
            if c.base in ("v_readlane_b32", "v_readfirstlane_b32") and (pv & c.src): n = max(n, 1)
            if c.dpp and (pv & c.src): n = max(n, 2)
            if c.base.startswith("v_permlane") and (pv & c.src): n = max(n, 2)
            if p.trans and not c.trans and (pv & c.src): n = max(n, 1)
            if p.dot and (pv & (c.src | c.dst)):
                if not (c.op == p.op and not (pv & (regs_of(c.ops[1]) | regs_of(c.ops[2])))): n = max(n, 3)
            if "exec" in p.dst: n = max(n, 5)
        if p.dot and c.cls in ("vmem", "ds") and (pv & c.src): n = max(n, 3)
        if "exec" in p.dst and c.cls == "mfma": n = max(n, 4)
    if p.cls == "mfma":
        P = p.passes
        if c.cls == "mfma":
            if pv & c.srcC:
                if c.srcC == p.dst and c.passes == P: n = max(n, 0 if P >= 4 else 2)
                else: n = max(n, {2: 4, 4: 6, 8: 10, 16: 18}[P])
            if pv & c.srcAB: n = max(n, {2: 5, 4: 8, 8: 12, 16: 20}[P])
            if (pv & c.dst) and not (pv & c.srcC): n = max(n, {2: 4, 4: 6, 8: 10, 16: 18}[P])
        elif c.cls in ("valu", "vmem", "ds"):
            if pv & (c.src | c.dst): n = max(n, {2: 5, 4: 8, 8: 12, 16: 20}[P])
        if c.cls == "valu" and (p.srcC & c.dst): n = max(n, {2: 1, 4: 3, 8: 7, 16: 15}[P])
    if p.cls == "salu" and "m0" in p.dst and c.lds_dma: n = max(n, 1)
    if p.cls == "vmem" and p.wide and (p.storedata & c.dst):
        n = max(n, 2 if c.cls == "valu" else 1)
    return n

def _val(tok, st):
    tok = tok.strip()
    if re.match(r"^s\d+$", tok): return st.get(tok)
    try:
        return int(tok, 0) & 0xffffffff
    except ValueError:
        return None

def salu_exec(c, st, spin):
    op = c.op; o = c.ops
    st = dict(st)
    M = 0xffffffff
    def setd(x):
        if re.match(r"^s\d+$", o[0]):
            if x is None: st.pop(o[0], None)
            else: st[o[0]] = x & M
    two = {"s_add_u32": lambda a, b: a + b, "s_sub_u32": lambda a, b: a - b, "s_mul_i32": lambda a, b: a * b,
           "s_lshl_b32": lambda a, b: a << (b & 31), "s_lshr_b32": lambda a, b: a >> (b & 31), "s_and_b32": lambda a, b: a & b,
           "s_or_b32": lambda a, b: a | b, "s_xor_b32": lambda a, b: a ^ b,
           "s_bfe_u32": lambda a, b: (a >> (b & 31)) & ((1 << ((b >> 16) & 127)) - 1)}
    cmps = {"s_cmp_eq_u32": lambda a, b: a == b, "s_cmp_lg_u32": lambda a, b: a != b, "s_cmp_lt_u32": lambda a, b: a < b,
            "s_cmp_ge_u32": lambda a, b: a >= b, "s_cmp_gt_u32": lambda a, b: a > b, "s_cmp_le_u32": lambda a, b: a <= b}
    if op == "s_mov_b32":
        x = _val(o[1], st); setd(None if x == spin else x)
    elif op in two:
        a_, b_ = _val(o[1], st), _val(o[2], st)
        setd(None if a_ is None or b_ is None else two[op](a_, b_))
        if op != "s_mul_i32": st.pop("scc", None)
    elif op in cmps:
        a_, b_ = _val(o[0], st), _val(o[1], st)
        if a_ is None or b_ is None: st.pop("scc", None)
        else: st["scc"] = int(cmps[op](a_, b_))
    elif op == "s_cselect_b32":
        if "scc" in st: setd(_val(o[1] if st["scc"] else o[2], st))
        else: setd(None)
    elif op == "s_cmov_b32":
        if "scc" in st:
            if st["scc"]: setd(_val(o[1], st))
        else: setd(None)
    else:
        for r in c.dst: st.pop(r, None)
        if op not in ("s_mov_b64", "s_cselect_b64", "s_nop", "s_waitcnt", "s_barrier", "s_branch", "s_setprio", "s_sleep", "s_getpc_b64") and not op.startswith("s_cbranch"):
            st.pop("scc", None)
    return st

def check(text, entry, ids=(0,), waves=(0,), wreg="s42", spin=400000, verbose=True):
    lines = text.split("\n")
    ins = []; labels = {}
    for i, l in enumerate(lines):
        t = l.split(";")[0].strip()
        if not t: continue
        if t.endswith(":"):
            labels[t[:-1]] = len(ins); continue
        if t.startswith("."): continue
        ins.append(Ins(l.strip(), i + 1))
    errs = set()
    W = 22
    covered = set()
    for wg in ids:
        barc = {}
        for wv in waves:
            seen = set()
            stack = [(labels[entry], (), (), (), {"s2": wg}, 0)]
            steps = 0
            ends = set()
            while stack:
                pc, win, vq, lq, st, nb = stack.pop()
                while True:
                    c = ins[pc]
                    if c.op.startswith("s_cbranch") or c.op == "s_branch":
                        key = (pc, win, vq, lq, tuple(sorted(st.items())), nb)
                        if key in seen: break
                        seen.add(key)
                    steps += 1
                    covered.add(pc)
                    if steps > 2000000: raise Exception("checker: too many states")
                    for (pi, d) in win:
                        n = need(ins[pi], c)
                        if d < n:
                            errs.add(f"HAZARD line {ins[pi].lineno}: '{ins[pi].text}' -> line {c.lineno}: '{c.text}' needs {n} has {d}")
                    use = c.src | c.dst
                    for q, nm in ((vq, "vm"), (lq, "lgkm")):
                        for e in q:
                            if e >= 0 and (ins[e].dst & use):
                                errs.add(f"WAITCNT({nm}) line {ins[e].lineno}: '{ins[e].text}' not waited before line {c.lineno}: '{c.text}'")
                    if c.op == "s_waitcnt":
                        t = c.text.split(";")[0]
                        m = re.search(r"vmcnt\((\d+)\)", t)
                        if m:
                            n = int(m.group(1)); assert n <= 63, c.text
                            vq = vq[len(vq) - n:] if 0 < n < len(vq) else (() if n == 0 else vq)
                        m = re.search(r"lgkmcnt\((\d+)\)", t)
                        if m:
                            n = int(m.group(1)); assert n <= 15, c.text
                            if n == 0: lq = ()
                            else:
                                nd = sum(1 for e in lq if ins[e].cls == "ds"); drop = max(0, nd - n); nl = []
                                for e in lq:
                                    if ins[e].cls == "ds" and drop > 0: drop -= 1
                                    else: nl.append(e)
                                lq = tuple(nl)
                    elif c.cls == "vmem":
                        vq = vq + (pc if c.dst else -1,)
                        while vq and vq[0] == -1: vq = vq[1:]
                    elif c.cls in ("ds", "smem"):
                        lq = lq + (pc,)
                    if c.cls == "salu": st = salu_exec(c, st, spin)
                    elif c.dst:
                        ch = [r for r in c.dst if r in st]
                        if ch or (c.op.startswith("v_readfirstlane") and c.ops[0] == wreg):
                            st = dict(st)
                            for r in ch: st.pop(r)
                            if c.op.startswith("v_readfirstlane") and c.ops[0] == wreg: st[wreg] = wv
                    if c.op == "s_barrier": nb += 1
                    k = c.nops
                    win = tuple((pi, d + k) for (pi, d) in win if d + k < W)
                    if c.dst or c.cls == "mfma" or c.wide: win = win + ((pc, 0),)
                    if c.op == "s_endpgm":
                        ends.add(nb); break
                    if c.op == "s_branch":
                        pc = labels[c.ops[0]]; continue
                    if c.op in ("s_cbranch_scc0", "s_cbranch_scc1") and "scc" in st:
                        if st["scc"] == (1 if c.op.endswith("1") else 0): pc = labels[c.ops[0]]
                        else: pc += 1
                        continue
                    if c.op.startswith("s_cbranch"):
                        stack.append((labels[c.ops[0]], win, vq, lq, st, nb))
                    pc += 1
            barc[wv] = tuple(sorted(ends))
        if len(set(barc.values())) != 1:
            errs.add(f"BARRIER count mismatch wg {wg}: {barc}")
        elif verbose and wg == ids[0]: print("barrier counts", barc[waves[0]])
    unc = [ins[i].lineno for i in range(len(ins)) if i not in covered]
    if verbose and unc: print("uncovered instrs:", len(unc), "first lines", unc[:10])
    for e in sorted(errs)[:14]: print(e)
    return len(errs)
```

```python
from mcommon import *

def gen_entry(A, name):
    A.raw(f".globl {name}")
    A.raw(".p2align 8")
    A.raw(f".type {name},@function")
    A.label(name)
    A("s_cmp_ge_u32 s2, 256")
    A("s_cbranch_scc1 L_exit")
    A.stamp(0)
    A(f"""
    s_load_dwordx4 s[4:7], s[0:1], 0
    s_load_dwordx8 s[32:39], s[0:1], 48
    s_load_dwordx2 s[8:9], s[0:1], 16
    s_load_dwordx4 s[28:31], s[0:1], 32
    v_lshrrev_b32 v1, 6, v0
    v_and_b32 v0, 63, v0
    v_readfirstlane_b32 s{sW}, v1
    """)

def gen_p1(A):
    L = lambda x: f"L1_{x}"
    PD = int(os.environ.get("PD1", "3"))
    sRT, sCT = 40, 41
    A(f"""
    s_and_b32 s3, s2, 3
    s_lshl_b32 s3, s3, 2
    s_bfe_u32 s14, s2, 0x20003
    s_add_u32 s{sRT}, s3, s14
    s_bfe_u32 s3, s2, 0x10002
    s_lshl_b32 s3, s3, 3
    s_lshr_b32 s14, s2, 5
    s_add_u32 s{sCT}, s3, s14
    """)
    SX, SWQ = SA, SB_
    STAT = 3*32768
    A(f"s_cmp_eq_u32 s{sCT}, 15")
    A(f"s_cbranch_scc1 {L('colsum')}")
    A(f"s_cmp_lt_u32 s{sW}, 4")
    A(f"s_cbranch_scc1 {L('compute')}")
    sLW = 43
    vX0, vX1, vWa = 2, 3, 4
    A(f"""
    s_sub_u32 s{sLW}, s{sW}, 4
    v_lshrrev_b32 v5, 3, v0
    s_lshl_b32 s3, s{sRT}, 2
    s_add_u32 s3, s3, s{sLW}
    s_lshl_b32 s3, s3, 5
    v_add_u32 v5, s3, v5
    v_mul_u32_u24 v5, 1280, v5
    v_and_b32 v6, 7, v0
    v_lshrrev_b32 v7, 4, v0
    v_xor_b32 v6, v6, v7
    v_lshlrev_b32 v6, 4, v6
    v_add_u32 v{vX0}, v5, v6
    v_xor_b32 v6, 64, v6
    v_add_u32 v{vX1}, v5, v6
    s_lshl_b32 s3, s{sLW}, 4
    v_add_u32 v5, s3, v7
    v_mul_u32_u24 v5, 3840, v5
    v_bfe_u32 v6, v0, 2, 2
    v_xor_b32 v6, v6, v7
    v_lshlrev_b32 v6, 6, v6
    v_and_b32 v8, 3, v0
    v_lshlrev_b32 v8, 4, v8
    v_add3_u32 v5, v5, v6, v8
    s_lshl_b32 s3, s{sCT}, 8
    v_add_u32 v{vWa}, s3, v5
    s_lshl_b32 s44, s{sLW}, 12
    s_waitcnt lgkmcnt(0)
    """)
    srd(A, SX, pX, X_BYTES); srd(A, SWQ, pWQKV, WQKV_BYTES); srd(A, SWS, pWS, WS_END)
    def issue(c):
        st = (c % 5) * 32768
        for i in range(4):
            A(f"s_add_u32 m0, s44, {st + i*1024}")
            A(f"s_mov_b32 s45, {8*i*1280 + c*128}")
            A(f"buffer_load_dwordx4 v{vX1 if i&1 else vX0}, {R(SX)}, s45 offen lds")
            A(f"s_add_u32 m0, s44, {st + 16384 + i*1024}")
            A(f"s_mov_b32 s45, {(c*64 + 4*i)*3840}")
            A(f"buffer_load_dwordx4 v{vWa}, {R(SWQ)}, s45 offen lds")
    for c in range(PD): issue(c)
    vAX = 10; vAW = 22
    A(f"""
    v_and_b32 v5, 31, v0
    v_lshrrev_b32 v6, 5, v0
    v_bfe_u32 v7, v0, 1, 3
    v_xor_b32 v7, v7, v6
    v_lshlrev_b32 v7, 4, v7
    v_lshlrev_b32 v5, 7, v5
    v_add3_u32 v{vAX}, v5, v7, s44
    """)
    for s_ in range(1, 4): A(f"v_xor_b32 v{vAX+s_}, {s_*32}, v{vAX}")
    for st in (1, 2):
        for s_ in range(4): A(f"v_add_u32 v{vAX+4*st+s_}, {st*65536}, v{vAX+s_}")
    A(f"""
    v_bfe_u32 v5, v0, 2, 2
    v_lshl_add_u32 v7, v6, 3, v5
    v_lshlrev_b32 v7, 8, v7
    v_xor_b32 v5, s{sLW}, v5
    v_lshlrev_b32 v5, 6, v5
    v_bfe_u32 v8, v0, 4, 1
    v_lshlrev_b32 v8, 5, v8
    v_add3_u32 v7, v7, v5, v8
    v_and_b32 v8, 3, v0
    v_lshlrev_b32 v8, 3, v8
    s_mov_b32 s3, 16384
    v_add3_u32 v{vAW}, v7, v8, s3
    v_add_u32 v{vAW+1}, 65536, v{vAW}
    v_add_u32 v{vAW+2}, 131072, v{vAW}
    s_mov_b32 s46, 0x3f803f80
    v_mov_b32 v26, 0
    v_mov_b32 v27, 0
    v_mov_b32 v28, 0
    """)
    vSum, vSq, vCs = 26, 27, 28
    vD = 32
    for c in range(10):
        last = min(9, c + PD - 1)
        A(f"s_waitcnt vmcnt({8*(last - c)})")
        A("s_barrier")
        if c + PD <= 9: issue(c + PD)
        st = c % 5
        o = (st & 1) * 32768; k = st >> 1
        for s_ in range(4):
            A(f"ds_read_b128 {v(vD+4*s_,4)}, v{vAX+4*k+s_} offset:{o}")
        for s_ in range(4):
            for u in range(2):
                A(f"ds_read_b64_tr_b16 {v(vD+16+4*s_+2*u,2)}, v{vAW+k} offset:{o + s_*4096 + u*1024}")
        A("s_waitcnt lgkmcnt(8)")
        for j in range(16):
            A(f"v_dot2_f32_bf16 v{vSum}, v{vD+j}, s46, v{vSum}")
            A(f"v_dot2_f32_bf16 v{vSq}, v{vD+j}, v{vD+j}, v{vSq}")
        A("s_waitcnt lgkmcnt(0)")
        for j in range(16):
            A(f"v_dot2_f32_bf16 v{vCs}, v{vD+16+j}, s46, v{vCs}")
    A(f"""
    s_nop 2
    v_mov_b32 v29, v{vSum}
    v_mov_b32 v30, v{vSq}
    v_mov_b32 v31, v{vCs}
    s_nop 1
    v_permlane32_swap_b32 v29, v{vSum}
    v_permlane32_swap_b32 v30, v{vSq}
    v_permlane32_swap_b32 v31, v{vCs}
    v_add_f32 v{vSum}, v29, v{vSum}
    v_add_f32 v{vSq}, v30, v{vSq}
    v_add_f32 v{vCs}, v31, v{vCs}
    v_mul_f32 v{vSum}, {hex(f32bits(1.0/640))}, v{vSum}
    v_mul_f32 v{vSq}, {hex(f32bits(1.0/640))}, v{vSq}
    v_fma_f32 v{vSq}, -v{vSum}, v{vSum}, v{vSq}
    v_max_f32 v{vSq}, 0, v{vSq}
    v_add_f32 v{vSq}, {hex(f32bits(1e-5))}, v{vSq}
    v_rsq_f32 v{vSq}, v{vSq}
    v_and_b32 v5, 31, v0
    v_lshlrev_b32 v5, 2, v5
    s_lshl_b32 s3, s{sLW}, 7
    s_add_u32 s3, s3, {STAT}
    v_add_u32 v5, s3, v5
    ds_write_b32 v5, v{vSum}
    ds_write_b32 v5, v{vSq} offset:512
    ds_write_b32 v5, v{vCs} offset:1024
    s_waitcnt lgkmcnt(0)
    s_barrier
    s_branch {L('done')}
    """)
    A.label(L('compute'))
    sWR, sWC = 43, 44
    vAX = 2; vAW = 14; FR = 32; ACC = 64
    A(f"""
    s_lshr_b32 s{sWR}, s{sW}, 1
    s_and_b32 s{sWC}, s{sW}, 1
    v_and_b32 v20, 31, v0
    v_lshrrev_b32 v21, 5, v0
    v_bfe_u32 v22, v0, 1, 3
    v_xor_b32 v22, v22, v21
    v_lshlrev_b32 v22, 4, v22
    v_lshlrev_b32 v23, 7, v20
    s_lshl_b32 s3, s{sWR}, 13
    v_add3_u32 v{vAX}, v23, v22, s3
    """)
    if "nocodepf" not in OPT:
        A(f"""
        s_getpc_b64 s[46:47]
        """)
        A.label("L_pcbase")
        A(f"""
        s_lshl_b32 s3, s{sW}, 13
        v_lshl_add_u32 v128, v0, 7, s3
        """)
        for i in range(2):
            A(f"""
            v_min_u32 v129, L_codeend-L_pcbase-4, v128
            global_load_dword v{254+i}, v129, s[46:47]
            v_add_u32 v128, 32768, v128
            """)
    for s_ in range(1, 4): A(f"v_xor_b32 v{vAX+s_}, {s_*32}, v{vAX}")
    for st in (1, 2):
        for s_ in range(4): A(f"v_add_u32 v{vAX+4*st+s_}, {st*65536}, v{vAX+s_}")
    A(f"""
    v_bfe_u32 v22, v0, 2, 2
    v_lshl_add_u32 v23, v21, 3, v22
    v_lshlrev_b32 v23, 8, v23
    s_lshl_b32 s3, s{sWC}, 1
    v_xor_b32 v22, s3, v22
    v_lshlrev_b32 v22, 6, v22
    v_bfe_u32 v24, v0, 4, 1
    v_lshlrev_b32 v24, 5, v24
    v_add3_u32 v23, v23, v22, v24
    v_and_b32 v24, 3, v0
    v_lshlrev_b32 v24, 3, v24
    s_mov_b32 s3, 16384
    v_add3_u32 v{vAW}, v23, v24, s3
    v_xor_b32 v{vAW+1}, 64, v{vAW}
    """)
    for st in (1, 2):
        for t in range(2): A(f"v_add_u32 v{vAW+2*st+t}, {st*65536}, v{vAW+t}")
    A("s_waitcnt lgkmcnt(0)")
    srd(A, SWS, pWS, WS_END)
    A(f"""
    s_lshl_b32 s3, s2, 3
    s_add_u32 s3, s3, s{sW}
    s_cmp_lg_u32 s3, 1
    s_cbranch_scc1 {L('nozero')}
    s_mov_b32 s3, {WS_CNT}
    v_lshl_add_u32 v131, v0, 8, s3
    v_mov_b32 v132, 0
    s_mov_b32 s3, 16384
    buffer_store_dword v132, v131, {R(SWS)}, 0 offen sc1
    buffer_store_dword v132, v131, {R(SWS)}, s3 offen sc1
    s_waitcnt vmcnt(0)
    v_mov_b32 v133, 1
    s_mov_b64 exec, 1
    global_store_dword v132, v133, s[{pDBG}:{pDBG+1}] sc1
    s_mov_b64 exec, -1
    """)
    A.label(L('nozero'))
    def reads(c, s_, f, part=None):
        st = c % 5; o = (st & 1) * 32768; k = st >> 1
        b = FR + 16*f
        l = [f"ds_read_b128 {v(b,4)}, v{vAX+4*k+s_} offset:{o}",
             f"ds_read_b64_tr_b16 {v(b+8,2)}, v{vAW+2*k} offset:{o + s_*4096}",
             f"ds_read_b64_tr_b16 {v(b+10,2)}, v{vAW+2*k} offset:{o + s_*4096 + 1024}",
             f"ds_read_b128 {v(b+4,4)}, v{vAX+4*k+s_} offset:{o + 4096}",
             f"ds_read_b64_tr_b16 {v(b+12,2)}, v{vAW+2*k+1} offset:{o + s_*4096}",
             f"ds_read_b64_tr_b16 {v(b+14,2)}, v{vAW+2*k+1} offset:{o + s_*4096 + 1024}"]
        return l
    def mfmas(f, first, isV):
        b = FR + 16*f
        l = []
        for (xs, ws) in ((0,0),(1,0),(0,1),(1,1)):
            acc = v(ACC + 16*(2*xs+ws), 16)
            X = v(b+4*xs, 4); W = v(b+8+4*ws, 4)
            cc = "0" if first else acc
            l.append(f"v_mfma_f32_32x32x16_bf16 {acc}, {X}, {W}, {cc}" if isV else f"v_mfma_f32_32x32x16_bf16 {acc}, {W}, {X}, {cc}")
        return l
    def weave(m, r, allin):
        A(m[0])
        for x in r[0:3]: A(x)
        if not allin: A("s_waitcnt lgkmcnt(3)")
        A(m[1])
        for x in r[3:6]: A(x)
        A(m[2]); A(m[3])
    def mainloop(isV):
        A("s_barrier")
        A.stamp(1)
        for x in reads(0, 0, 0): A(x)
        for c in range(10):
            for s_ in range(3):
                A("s_waitcnt lgkmcnt(3)")
                weave(mfmas(s_ & 1, c == 0 and s_ == 0, isV), reads(c, s_+1, (s_+1) & 1), False)
            A("s_waitcnt lgkmcnt(0)")
            if c < 9:
                A("s_barrier")
                weave(mfmas(1, False, isV), reads(c+1, 0, 0), True)
            else:
                for x in mfmas(1, False, isV): A(x)
    A(f"s_cmp_ge_u32 s{sCT}, 10")
    A(f"s_cbranch_scc1 {L('vpath')}")
    mainloop(False)
    sSC = 46
    vST = 2
    A(f"""
    s_cmp_ge_u32 s{sCT}, 5
    s_cselect_b32 s{sSC}, 1.0, {hex(f32bits(QSCALE))}
    s_cselect_b32 s47, {WS_K - 5*32768}, {WS_Q}
    s_cselect_b64 vcc, -1, 0
    v_and_b32 v6, 19, v20
    v_bfe_u32 v7, v20, 2, 1
    v_lshl_or_b32 v6, v7, 3, v6
    v_bfe_u32 v7, v20, 3, 1
    v_lshl_or_b32 v6, v7, 2, v6
    v_cndmask_b32 v6, v20, v6, vcc
    v_lshlrev_b32 v6, 4, v6
    v_lshl_add_u32 v6, v21, 11, v6
    s_mul_i32 s3, s{sRT}, 163840
    s_add_u32 s47, s47, s3
    s_lshl_b32 s3, s{sCT}, 15
    s_add_u32 s47, s47, s3
    s_lshl_b32 s3, s{sWC}, 14
    s_add_u32 s47, s47, s3
    s_lshl_b32 s3, s{sWR}, 10
    s_add_u32 s47, s47, s3
    v_add_u32 v{vST}, s47, v6
    s_barrier
    """)
    vMN, vRS = 14, 16
    CSR = 32
    A(f"""
    s_lshl_b32 s3, s{sWR}, 8
    s_add_u32 s3, s3, {STAT}
    v_lshl_add_u32 v18, v20, 2, s3
    ds_read_b32 v{vMN}, v18
    ds_read_b32 v{vMN+1}, v18 offset:128
    ds_read_b32 v{vRS}, v18 offset:512
    ds_read_b32 v{vRS+1}, v18 offset:640
    s_lshl_b32 s3, s{sWC}, 8
    s_add_u32 s3, s3, {STAT+1024}
    v_lshl_add_u32 v19, v21, 4, s3
    """)
    for ws in range(2):
        for i in range(4):
            A(f"ds_read_b128 {v(CSR+16*ws+4*i,4)}, v19 offset:{ws*128+i*32}")
    A("s_waitcnt lgkmcnt(8)")
    A(f"v_mul_f32 v{vRS}, s{sSC}, v{vRS}")
    A(f"v_mul_f32 v{vRS+1}, s{sSC}, v{vRS+1}")
    A("s_waitcnt lgkmcnt(0)")
    for ws in range(2):
        for xs in range(2):
            b = ACC + 16*(2*xs+ws)
            for r in range(16): A(f"v_fma_f32 v{b+r}, -v{vMN+xs}, v{CSR+16*ws+r}, v{b+r}")
            for r in range(16): A(f"v_mul_f32 v{b+r}, v{vRS+xs}, v{b+r}")
            for r in range(8): A(f"v_cvt_pk_bf16_f32 v{b+r}, v{b+2*r}, v{b+2*r+1}")
            A(f"s_mov_b32 s3, {ws*8192 + xs*512}")
            A(f"s_mov_b32 s14, {ws*8192 + xs*512 + 4096}")
            for ip in range(2):
                A(f"v_permlane32_swap_b32 v{b+4*ip}, v{b+4*ip+2}")
                A(f"v_permlane32_swap_b32 v{b+4*ip+1}, v{b+4*ip+3}")
            for ip in range(2):
                A(f"buffer_store_dwordx4 {v(b+4*ip,4)}, v{vST}, {R(SWS)}, s{14 if ip else 3} offen {STF}")
    A(f"s_branch {L('done')}")
    A.label(L('vpath'))
    mainloop(True)
    vVA = 2
    A(f"""
    s_mul_i32 s3, s{sRT}, 163840
    s_mul_i32 s14, s{sWR}, 81920
    s_add_u32 s3, s3, s14
    s_lshl_b32 s14, s{sCT}, 11
    s_add_u32 s3, s3, s14
    s_lshl_b32 s14, s{sWC}, 10
    s_add_u32 s3, s3, s14
    s_add_u32 s3, s3, {WS_V - 10*2048}
    v_mul_u32_u24 v5, 10240, v21
    v_lshl_add_u32 v5, v20, 4, v5
    v_add_u32 v{vVA}, s3, v5
    s_barrier
    """)
    vCSL = 4
    A(f"""
    s_lshl_b32 s3, s{sWC}, 8
    s_add_u32 s3, s3, {STAT+1024}
    v_lshl_add_u32 v18, v20, 2, s3
    ds_read_b32 v{vCSL}, v18
    ds_read_b32 v{vCSL+1}, v18 offset:128
    s_lshl_b32 s3, s{sWR}, 8
    s_add_u32 s3, s3, {STAT}
    v_lshl_add_u32 v19, v21, 4, s3
    """)
    for xs in range(2):
        for i in range(4):
            A(f"ds_read_b128 {v(128+32*xs+4*i,4)}, v19 offset:{xs*128+i*32}")
            A(f"ds_read_b128 {v(144+32*xs+4*i,4)}, v19 offset:{512+xs*128+i*32}")
    for xs in range(2):
        A(f"s_waitcnt lgkmcnt({8 if xs == 0 else 0})")
        for ws in range(2):
            b = ACC + 16*(2*xs+ws)
            for r in range(16): A(f"v_fma_f32 v{b+r}, -v{128+32*xs+r}, v{vCSL+ws}, v{b+r}")
            for r in range(16): A(f"v_mul_f32 v{b+r}, v{144+32*xs+r}, v{b+r}")
            for r in range(8): A(f"v_cvt_pk_bf16_f32 v{b+r}, v{b+2*r}, v{b+2*r+1}")
            for sp in range(2):
                A(f"s_mov_b32 s3, {(2*xs+sp)*20480}")
                A(f"buffer_store_dwordx4 {v(b+4*sp,4)}, v{vVA}, {R(SWS)}, s3 offen offset:{ws*512} {STF}")
    A(f"s_branch {L('done')}")
    A.label(L('colsum'))
    SG = SA
    A(f"""
    s_waitcnt lgkmcnt(0)
    s_cmp_lt_u32 s{sW}, 4
    s_cselect_b32 s{SG}, s{pWG}, s{pWU}
    s_cselect_b32 s{SG+1}, s{pWG+1}, s{pWU+1}
    s_mov_b32 s{SG+2}, {WG_BYTES}
    s_mov_b32 s{SG+3}, 0x00020000
    v_mul_u32_u24 v2, 43, v0
    v_lshrrev_b32 v2, 9, v2
    v_mul_u32_u24 v3, 12, v2
    v_sub_u32 v3, v0, v3
    s_and_b32 s3, s{sW}, 3
    s_mul_i32 s3, s3, 160
    v_add_u32 v4, s3, v2
    v_mul_u32_u24 v4, 3072, v4
    s_mul_i32 s3, s{sRT}, 192
    v_lshl_add_u32 v5, v3, 4, s3
    v_add_u32 v4, v4, v5
    """)
    srd(A, SWS, pWS, WS_END)
    for i in range(32):
        A(f"s_mov_b32 s3, {i*5*3072}")
        A(f"buffer_load_dwordx4 {v(32+4*i,4)}, v4, {R(SG)}, s3 offen")
    for j in range(8): A(f"v_mov_b32 v{8+j}, 0")
    A("s_mov_b32 s46, 0x00003f80")
    A("s_mov_b32 s47, 0x3f800000")
    for i in range(32):
        A(f"s_waitcnt vmcnt({31-i})")
        for j in range(4):
            A(f"v_dot2_f32_bf16 v{8+2*j}, v{32+4*i+j}, s46, v{8+2*j}")
            A(f"v_dot2_f32_bf16 v{9+2*j}, v{32+4*i+j}, s47, v{9+2*j}")
    A(f"""
    s_mul_i32 s3, s{sW}, {6*384}
    v_mul_u32_u24 v5, 384, v2
    v_lshl_add_u32 v5, v3, 5, v5
    v_add_u32 v5, s3, v5
    ds_write_b128 v5, v[8:11]
    ds_write_b128 v5, v[12:15] offset:16
    s_waitcnt lgkmcnt(0)
    s_barrier
    s_cmp_ge_u32 s{sW}, 4
    s_cbranch_scc1 {L('done')}
    s_and_b32 s3, s{sW}, 1
    s_lshl_b32 s3, s3, 6
    v_add_u32 v2, s3, v0
    s_lshr_b32 s14, s{sW}, 1
    s_mul_i32 s3, s14, {4*6*384}
    v_lshl_add_u32 v3, v2, 2, s3
    """)
    n = 0
    for w in range(4):
        for r in range(5):
            A(f"ds_read_b32 v{32+n}, v3 offset:{w*6*384 + r*384}")
            n += 1
            if n == 10: A("s_waitcnt lgkmcnt(0)")
    A("s_waitcnt lgkmcnt(0)")
    for j in range(1, 20): A(f"v_add_f32 v32, v32, v{32+j}")
    A(f"""
    s_mul_i32 s3, s14, 1536
    s_mul_i32 s15, s{sRT}, 96
    s_add_u32 s3, s3, s15
    v_add_u32 v4, s3, v2
    v_lshlrev_b32 v4, 2, v4
    v_add_u32 v4, {WS_CS}, v4
    v_cmp_gt_u32 vcc, 96, v2
    s_and_saveexec_b64 s[14:15], vcc
    buffer_store_dword v32, v4, {R(SWS)}, 0 offen {STF}
    s_mov_b64 exec, -1
    """)
    A.label(L('done'))
    A(f"""
    v_mov_b32 v200, 0
    s_cmp_lg_u32 s{sW}, 0
    s_cbranch_scc1 {L('s1a')}
    global_load_dword v201, v200, s[{pDBG}:{pDBG+1}] sc1
    """)
    A.label(L('s1a'))
    A("s_waitcnt vmcnt(0)")
    A("s_barrier")
    A.stamp(2)
    A(f"""
    s_cmp_lg_u32 s{sW}, 0
    s_cbranch_scc1 {L('s1b')}
    s_mov_b32 s14, {SPIN}
    """)
    A.label(L('rdy'))
    A(f"""
    v_readfirstlane_b32 s3, v201
    s_cmp_lg_u32 s3, 0
    s_cbranch_scc1 {L('rdy2')}
    global_load_dword v201, v200, s[{pDBG}:{pDBG+1}] sc1
    s_waitcnt vmcnt(0)
    s_sub_u32 s14, s14, 1
    s_cmp_lg_u32 s14, 0
    s_cbranch_scc1 {L('rdy')}
    """)
    A.label(L('rdy2'))
    A(f"s_and_b32 s15, s2, 15")
    arrive(A, 15, 200)
    A.label(L('s1b'))
```

```python
from mcommon import *
XR = 246
WO_LDS = 59392
sRT64, sCT8 = 56, 57

def gen_p2(A):
    L = lambda x: f"L2_{x}"
    sHD, sQB, sQG, sKH, sMODE, sCNT, sDELTA = 40, 41, 43, 44, 45, 46, 47
    sVM = 48
    sRING, sM0, sSO, sODD = 50, 51, 52, 53
    vL16, vK, vKX, vV, vIDX = 2, 4, 5, 6, 7
    QM = 8; QA = 16; QB = 20; KM = 24; KX = 32; VB = 36
    T0 = 52
    SB = 64; OB = 96; CI = 128
    vDM = 160
    PR = 168
    vPA = 164
    SLOT = 11264
    A(f"""
    s_and_b32 s3, s2, 7
    s_lshl_b32 s3, s3, 2
    s_bfe_u32 s14, s2, 0x20003
    s_add_u32 s{sHD}, s3, s14
    s_lshr_b32 s{sQB}, s2, 5
    s_mov_b32 s{sMODE}, 0
    s_mov_b32 s{sVM}, 0x000fffff
    s_mov_b32 s{sVM+1}, 0x000fffff
    s_and_b32 s{sQG}, s{sW}, 3
    s_lshr_b32 s{sKH}, s{sW}, 2
    s_and_b32 s{sODD}, s{sHD}, 1
    s_and_b32 s3, s2, 3
    s_lshl_b32 s3, s3, 3
    s_bfe_u32 s14, s2, 0x30003
    s_add_u32 s{sRT64}, s3, s14
    s_bfe_u32 s3, s2, 0x10002
    s_lshl_b32 s3, s3, 2
    s_lshr_b32 s14, s2, 6
    s_add_u32 s{sCT8}, s3, s14
    v_lshlrev_b32 v{vL16}, 4, v0
    v_and_b32 v{T0}, 31, v0
    v_lshrrev_b32 v{T0+1}, 5, v0
    s_mul_i32 s{sRING}, s{sKH}, {4*SLOT}
    s_mul_i32 s{sM0}, s{sQG}, 3072
    s_add_u32 s{sM0}, s{sM0}, s{sRING}
    s_lshr_b32 s96, s{sHD}, 1
    s_mul_i32 s96, s96, 10240
    """)
    A(f"""
    s_cmp_ge_u32 s{sQG}, 2
    s_cbranch_scc1 {L('vdma')}
    s_lshl_b32 s3, s{sODD}, 12
    s_add_u32 s3, s3, s96
    s_mul_i32 s14, s{sQG}, 3072
    s_add_u32 s3, s3, s14
    s_add_u32 s3, s3, {WS_K}
    v_add_u32 v{vDM}, s3, v{vL16}
    v_add_u32 v{vDM+1}, 1024, v{vDM}
    v_add_u32 v{vDM+2}, 2048, v{vDM}
    s_mov_b32 s97, 2048
    s_branch {L('dmago')}
    """)
    A.label(L('vdma'))
    A(f"""
    s_sub_u32 s3, s{sQG}, 2
    s_mul_i32 s3, s3, 192
    s_mul_i32 s14, s{sHD}, 320
    s_add_u32 s14, s14, {WS_V}
    s_cmp_eq_u32 s{sQG}, 3
    s_mov_b32 s97, 2048
    s_cmov_b32 s97, 1024
    s_cselect_b32 s15, 64, 128
    """)
    for k in range(3):
        if k < 2: A(f"v_add_u32 v{T0+2}, {64*k}, v0")
        else: A(f"v_add_u32 v{T0+2}, s15, v0")
        A(f"""
        v_add_u32 v{T0+2}, s3, v{T0+2}
        v_mul_u32_u24 v{T0+3}, 3277, v{T0+2}
        v_lshrrev_b32 v{T0+3}, 16, v{T0+3}
        v_mul_u32_u24 v{T0+4}, 20, v{T0+3}
        v_sub_u32 v{T0+2}, v{T0+2}, v{T0+4}
        v_mul_u32_u24 v{T0+3}, 10240, v{T0+3}
        v_lshl_add_u32 v{T0+3}, v{T0+2}, 4, v{T0+3}
        v_add_u32 v{vDM+k}, s14, v{T0+3}
        """)
    A.label(L('dmago'))
    A(f"""
    s_lshl_b32 s3, s{sQB}, 1
    s_lshr_b32 s14, s{sQG}, 1
    s_add_u32 s3, s3, s14
    s_mul_i32 s3, s3, 163840
    s_add_u32 s3, s3, s96
    s_and_b32 s14, s{sQG}, 1
    s_lshl_b32 s14, s14, 10
    s_add_u32 s3, s3, s14
    s_lshl_b32 s14, s{sKH}, 9
    s_add_u32 s98, s3, s14
    s_sub_u32 s99, s3, s14
    s_add_u32 s99, s99, 512
    s_mul_i32 s3, s{sODD}, 6144
    v_lshlrev_b32 v{T0+2}, 4, v{T0}
    v_lshl_add_u32 v{T0+3}, v{T0+1}, 11, v{T0+2}
    v_add_u32 v{T0+3}, s3, v{T0+3}
    s_lshl_b32 s3, s{sODD}, 3
    s_add_u32 s3, s3, 4096
    v_add_u32 v{T0+2}, s3, v{T0+2}
    v_mov_b32 v{vIDX}, 0xdddddddd
    """)
    for i in range(32): A(f"v_mov_b32 v{CI+i}, 0")
    sPJ, sPB, sPP, sPD0 = 100, 101, 54, 55
    A(f"""
    s_lshl_b32 s3, s2, 3
    s_add_u32 s3, s3, s{sW}
    v_lshrrev_b32 v{T0+4}, 4, v0
    v_and_b32 v{T0+5}, 15, v0
    s_cmp_lt_u32 s3, 960
    s_cbranch_scc1 {L('pgu')}
    s_sub_u32 s3, s3, 960
    s_mov_b32 s{sPP}, 1280
    s_mul_i32 s14, s3, 6554
    s_lshr_b32 s14, s14, 16
    s_mul_i32 s15, s14, 10
    s_sub_u32 s15, s3, s15
    s_lshl_b32 s{sPD0}, s15, 2
    s_mov_b32 s10, 13108
    s_mov_b32 s11, 5
    s_cmp_lt_u32 s14, 48
    s_cbranch_scc0 {L('pwo')}
    """)
    srd(A, SA, pWD, WD_BYTES)
    A(f"""
    s_mov_b32 s{sPJ}, {4*1280}
    s_mul_i32 s{sPB}, s14, {32*1280}
    v_lshlrev_b32 v{T0+4}, 3, v{T0+4}
    s_mov_b32 s12, 245760
    s_mul_i32 s13, s14, 5120
    s_add_u32 s13, s13, {WS_WD}
    s_branch {L('pdone')}
    """)
    A.label(L('pwo'))
    srd(A, SA, pWO, WO_BYTES)
    A(f"""
    s_sub_u32 s14, s14, 48
    s_mov_b32 s12, 102400
    s_cmp_lt_u32 s14, 16
    s_cbranch_scc0 {L('pwob')}
    s_mov_b32 s{sPJ}, {8*1280}
    s_mul_i32 s{sPB}, s14, {40*1280}
    v_lshrrev_b32 v{T0+6}, 1, v{T0+4}
    v_mul_u32_u24 v{T0+6}, 12, v{T0+6}
    v_lshl_add_u32 v{T0+4}, v{T0+4}, 2, v{T0+6}
    s_lshr_b32 s3, s14, 3
    s_and_b32 s14, s14, 7
    s_branch {L('pwoc')}
    """)
    A.label(L('pwob'))
    A(f"""
    s_sub_u32 s14, s14, 16
    s_mov_b32 s{sPJ}, {20*1280}
    s_mul_i32 s{sPB}, s14, {160*1280}
    s_add_u32 s{sPB}, s{sPB}, {16*1280}
    v_mul_u32_u24 v{T0+4}, 40, v{T0+4}
    s_lshr_b32 s3, s14, 1
    s_and_b32 s14, s14, 1
    s_add_u32 s14, s14, 8
    """)
    A.label(L('pwoc'))
    A(f"""
    s_mul_i32 s13, s3, 7
    s_add_u32 s13, s13, 6
    s_mul_i32 s15, s3, 3
    s_sub_u32 s15, s15, 7
    s_cmp_ge_u32 s14, 7
    s_cselect_b32 s13, s15, s13
    s_add_u32 s13, s13, s14
    s_mul_i32 s13, s13, 5120
    s_add_u32 s13, s13, {WS_WO}
    s_cmp_lt_u32 s3, 2
    s_cbranch_scc1 {L('pdone')}
    s_mov_b32 s{SA+2}, 0
    s_mov_b32 s13, 0x40000000
    s_branch {L('pdone')}
    """)
    A.label(L('pgu'))
    A(f"""
    s_cmp_ge_u32 s3, 480
    s_cselect_b32 s{SA}, s{pWU}, s{pWG}
    s_cselect_b32 s{SA+1}, s{pWU+1}, s{pWG+1}
    s_cselect_b32 s13, 6144, 0
    s_cselect_b32 s14, 480, 0
    s_mov_b32 s{SA+2}, {WG_BYTES}
    s_mov_b32 s{SA+3}, 0x00020000
    s_sub_u32 s3, s3, s14
    s_mul_i32 s14, s3, 2731
    s_lshr_b32 s14, s14, 16
    s_mul_i32 s15, s14, 24
    s_sub_u32 s15, s3, s15
    s_lshl_b32 s{sPD0}, s15, 2
    s_mov_b32 s{sPP}, 3072
    s_mov_b32 s{sPJ}, {4*3072}
    s_mul_i32 s{sPB}, s14, {32*3072}
    v_lshlrev_b32 v{T0+4}, 3, v{T0+4}
    s_mov_b32 s10, 10923
    s_mov_b32 s11, 6
    s_mov_b32 s12, 245760
    s_mul_i32 s14, s14, 12288
    s_add_u32 s13, s13, s14
    s_add_u32 s13, s13, {WS_WGU}
    """)
    A.label(L('pdone'))
    A(f"""
    v_mul_lo_u32 v{vPA}, v{T0+4}, s{sPP}
    v_lshl_add_u32 v{vPA}, v{T0+5}, 1, v{vPA}
    s_lshl_b32 s3, s{sPD0}, 5
    v_add_u32 v{vPA}, s3, v{vPA}
    """)
    A(f"""
    s_cmp_lg_u32 s{sW}, 0
    s_cbranch_scc1 {L('s1w')}
    s_mov_b32 s15, {C1}
    """)
    poll(A, 15, 16, 16, 200)
    A.label(L('s1w'))
    A("s_barrier")
    A.stamp(3)
    A(f"""
    buffer_load_dwordx4 {v(QM,4)}, v{T0+3}, {R(SWS)}, s98 offen {LDF}
    buffer_load_dwordx4 {v(QM+4,4)}, v{T0+3}, {R(SWS)}, s99 offen {LDF}
    buffer_load_dwordx2 {v(QA,2)}, v{T0+2}, {R(SWS)}, s98 offen {LDF}
    buffer_load_dwordx2 {v(QA+2,2)}, v{T0+2}, {R(SWS)}, s99 offen {LDF}
    """)
    def dma(slot_expr_imm=None, sreg=None):
        for k in range(3):
            if sreg is None:
                if k < 2: A(f"s_add_u32 m0, s{sM0}, {slot_expr_imm*SLOT + k*1024}")
                else:
                    A(f"s_add_u32 s3, s{sM0}, {slot_expr_imm*SLOT}")
                    A(f"s_add_u32 m0, s3, s97")
            else:
                if k < 2: A(f"s_add_u32 m0, s{sreg}, {k*1024}")
                else: A(f"s_add_u32 m0, s{sreg}, s97")
            A("s_nop 0")
            A(f"buffer_load_dwordx4 v{vDM+k}, {R(SWS)}, s{sSO} offen {LDF} lds")
        A(f"s_add_u32 s{sSO}, s{sSO}, 163840")
    A.label(L('start'))
    A(f"s_mul_i32 s{sSO}, s{sKH}, {8*163840}")
    for c in range(4): dma(c)
    A(f"""
    s_lshl_b32 s3, s{sODD}, 11
    s_add_u32 s3, s3, s{sRING}
    v_lshlrev_b32 v{vK}, 4, v{T0}
    v_lshl_add_u32 v{vK}, v{T0+1}, 11, v{vK}
    v_add_u32 v{vK}, s3, v{vK}
    s_mul_i32 s3, s{sODD}, {8-4096}
    s_add_u32 s3, s3, 4096
    s_add_u32 s3, s3, s{sRING}
    v_add_u32 v{vKX}, s3, v{vL16}
    v_mul_u32_u24 v{vV}, 320, v{T0+1}
    v_lshl_add_u32 v{vV}, v{T0}, 4, v{vV}
    v_add_u32 v{vV}, s{sRING}, v{vV}
    """)
    for i in range(16): A(f"v_mov_b32 v{VB+i}, 0x3f803f80")
    for i in range(32): A(f"v_mov_b32 v{OB+i}, 0")
    for i in range(8): A(f"v_mov_b32 v{SB+16+8+i}, 0")
    A(f"""
    s_cmp_lg_u32 s{sMODE}, 0
    s_cbranch_scc1 {L('main')}
    s_waitcnt vmcnt(12)
    v_cmp_eq_u32 vcc, 0, v{T0+1}
    s_nop 1
    """)
    for q in range(2):
        for j in range(2):
            A(f"v_cndmask_b32 v{QB+2*q+j}, v{QA+2*q+j}, 0, vcc")
            A(f"v_cndmask_b32 v{QA+2*q+j}, 0, v{QA+2*q+j}, vcc")
    A.label(L('main'))
    def rdK(kt): A(f"ds_read_b128 {v(KM+4*(kt&1),4)}, v{vK} offset:{(kt&3)*512}")
    def rdKX(p): A(f"ds_read_b64 {v(KX+2*p,2)}, v{vKX} offset:{p*1024}")
    def rdV(kt):
        A(f"s_mov_b64 exec, s[{sVM}:{sVM+1}]")
        for sp in range(2):
            A(f"ds_read_b128 {v(VB+8*(kt&1)+4*sp,4)}, v{vV} offset:{6144+(2*(kt&3)+sp)*640}")
        A("s_mov_b64 exec, -1")
    def qk1(t):
        kt, qs = (t >> 1), t & 1
        A(f"v_mfma_f32_32x32x16_bf16 {v(SB+16*qs,16)}, {v(KM+4*(kt&1),4)}, {v(QM+4*qs,4)}, {v(CI+16*qs,16)}")
    def qk2(t):
        kt, qs = (t >> 1) & 3, t & 1
        Q = (QB if kt & 1 else QA) + 2*qs
        A(f"v_mfma_f32_32x32x8_bf16 {v(SB+16*qs,16)}, {v(KX+2*(kt>>1),2)}, {v(Q,2)}, {v(SB+16*qs,16)}")
    def pv(t, sp):
        kt, qs = (t >> 1), t & 1
        A(f"v_smfmac_f32_32x32x32_bf16 {v(OB+16*qs,16)}, {v(VB+8*(kt&1)+4*sp,4)}, {v(SB+16*qs+8*sp,8)}, v{vIDX}")
    def ex(t, a_, b_):
        for i in range(a_, b_): A(f"v_exp_f32 v{SB+16*(t&1)+i}, v{SB+16*(t&1)+i}")
    A("s_waitcnt vmcnt(9)")
    A("s_barrier")
    A.stamp(4)
    rdK(0); rdKX(0); rdK(1); rdKX(1); rdV(0)
    A(f"s_mov_b32 s{sCNT}, 0")
    A("s_waitcnt lgkmcnt(4)")
    qk1(0); qk2(0)
    A("s_waitcnt lgkmcnt(0)")
    A("s_nop 9")
    A.raw(".p2align 6")
    A.label(L('loop'))
    for t in range(8):
        pv(t-1, 1)
        ex(t, 0, 4)
        qk1(t+1)
        ex(t, 4, 8)
        qk2(t+1)
        ex(t, 8, 12)
        pv(t, 0)
        if t == 4:
            A(f"s_cmp_lt_u32 s{sCNT}, 6")
            A(f"s_cbranch_scc1 {L('special')}")
            A.label(L('back'))
        ex(t, 12, 16)
        A("s_waitcnt lgkmcnt(0)")
        if t & 1 == 0:
            rdV(t//2 + 1)
            if t == 4:
                A(f"s_and_b32 s3, s{sCNT}, 3")
                A(f"s_cmp_eq_u32 s3, 3")
                A(f"s_mov_b32 s{sDELTA}, {SLOT}")
                A(f"s_cmov_b32 s{sDELTA}, {(-3*SLOT) & 0xffffffff}")
                A(f"v_add_u32 v{vK}, s{sDELTA}, v{vK}")
                A(f"v_add_u32 v{vKX}, s{sDELTA}, v{vKX}")
                A(f"v_add_u32 v{vV}, s{sDELTA}, v{vV}")
        else:
            rdK((t+1)//2 + 1)
            if t == 5: rdKX(0)
            if t == 7:
                rdKX(1)
                A(f"s_add_u32 s{sCNT}, s{sCNT}, 1")
                A(f"s_cmp_lt_u32 s{sCNT}, 8")
                A(f"s_cbranch_scc1 {L('loop')}")
    pv(7, 1)
    A.stamp(5)
    A.c("combine key halves")
    A(f"""
    s_waitcnt lgkmcnt(0)
    s_barrier
    s_lshl_b32 s3, s{sW}, 12
    v_add_u32 v{T0+4}, s3, v{vL16}
    s_xor_b32 s3, s3, 0x4000
    v_add_u32 v{T0+7}, s3, v{vL16}
    s_nop 6
    """)
    for i in range(4): A(f"ds_write_b128 v{T0+4}, {v(OB+16+4*i,4)} offset:{i*1024}")
    A(f"""
    s_lshl_b32 s3, s{sQB}, 4
    s_lshl_b32 s14, s{sQG}, 2
    s_add_u32 s3, s3, s14
    s_lshl_b32 s14, s{sKH}, 1
    s_add_u32 s3, s3, s14
    v_bfe_u32 v{T0+5}, v0, 4, 1
    v_add_u32 v{T0+5}, s3, v{T0+5}
    v_mul_u32_u24 v{T0+5}, 20480, v{T0+5}
    v_and_b32 v{T0+8}, 15, v0
    s_lshl_b32 s3, s{sHD}, 9
    s_add_u32 s3, s3, {WS_O}
    v_lshl_add_u32 v{T0+6}, v{T0+1}, 8, s3
    v_lshl_add_u32 v{T0+6}, v{T0+8}, 4, v{T0+6}
    v_add_u32 v{T0+6}, v{T0+6}, v{T0+5}
    s_lshl_b32 s3, s{sHD}, 7
    s_add_u32 s3, s3, {WS_O + 16384}
    v_lshl_add_u32 v{T0+5}, v{T0+8}, 3, v{T0+5}
    v_add_u32 v{T0+5}, s3, v{T0+5}
    s_waitcnt lgkmcnt(0)
    s_barrier
    """)
    for i in range(4): A(f"ds_read_b128 {v(SB+4*i,4)}, v{T0+7} offset:{i*1024}")
    A("s_waitcnt lgkmcnt(0)")
    A(f"v_add_f32 v{OB+12}, v{OB+12}, v{SB+12}")
    A(f"v_rcp_f32 v{OB+13}, v{OB+12}")
    for i in range(12): A(f"v_add_f32 v{OB+i}, v{OB+i}, v{SB+i}")
    for i in range(12): A(f"v_mul_f32 v{OB+i}, v{OB+i}, v{OB+13}")
    for i in range(6): A(f"v_cvt_pk_bf16_f32 v{SB+i}, v{OB+2*i}, v{OB+2*i+1}")
    A(f"""
    buffer_store_dwordx4 {v(SB,4)}, v{T0+6}, {R(SWS)}, 0 offen {STF}
    s_mov_b32 exec_hi, 0
    buffer_store_dwordx2 {v(SB+4,2)}, v{T0+5}, {R(SWS)}, 0 offen {STF}
    s_mov_b64 exec, -1
    v_mov_b32 v{T0+7}, 0
    """)
    for i in range(12): A(f"v_fmac_f32 v{T0+7}, 0, v{OB+i}")
    A(f"""
    v_cmp_u_f32 s[14:15], v{T0+7}, v{T0+7}
    s_mov_b32 s3, {hex(f32bits(2.0**-40))}
    v_cmp_nle_f32 vcc, s3, v{OB+12}
    s_or_b64 s[14:15], s[14:15], vcc
    s_mov_b32 s3, {hex(f32bits(2.0**40))}
    v_cmp_nge_f32 vcc, s3, v{OB+12}
    s_or_b64 s[14:15], s[14:15], vcc
    s_cselect_b32 s3, 1, 0
    v_mov_b32 v{T0+7}, s3
    s_lshl_b32 s3, s{sW}, 2
    s_add_u32 s3, s3, 32768
    v_mov_b32 v{T0+8}, s3
    ds_write_b32 v{T0+8}, v{T0+7}
    v_and_b32 v{T0+8}, 7, v0
    v_lshlrev_b32 v{T0+8}, 2, v{T0+8}
    s_waitcnt vmcnt(0) lgkmcnt(0)
    s_barrier
    ds_read_b32 v{T0+7}, v{T0+8} offset:32768
    s_waitcnt lgkmcnt(0)
    v_cmp_ne_u32 vcc, 0, v{T0+7}
    s_cmp_eq_u64 vcc, 0
    s_cbranch_scc1 {L('done')}
    s_cmp_lg_u32 s{sMODE}, 0
    s_cbranch_scc1 {L('done')}
    s_mov_b32 s{sMODE}, 1
    s_barrier
    """)
    MX = T0 + 9
    A(f"""
    v_mov_b32 v{MX}, 0xff800000
    v_mov_b32 v{MX+1}, 0xff800000
    s_add_u32 s15, s96, {WS_K}
    s_mov_b32 s{sCNT}, 0
    """)
    A.label(L('mloop'))
    for kt in range(4):
        A(f"buffer_load_dwordx4 {v(KM,4)}, v{T0+3}, {R(SWS)}, s15 offen offset:{kt*512} {LDF}")
        A(f"buffer_load_dwordx2 {v(KX,2)}, v{T0+2}, {R(SWS)}, s15 offen offset:{kt*512} {LDF}")
        A("s_waitcnt vmcnt(0)")
        for qs in range(2):
            A(f"v_mfma_f32_32x32x16_bf16 {v(CI+16*qs,16)}, {v(KM,4)}, {v(QM+4*qs,4)}, 0")
            A(f"v_mfma_f32_32x32x8_bf16 {v(CI+16*qs,16)}, {v(KX,2)}, {v(QA+2*qs,2)}, {v(CI+16*qs,16)}")
        A("s_nop 15")
        for qs in range(2):
            for i in range(8):
                A(f"v_max3_f32 v{MX+qs}, v{CI+16*qs+2*i}, v{CI+16*qs+2*i+1}, v{MX+qs}")
    A(f"""
    s_add_u32 s15, s15, 163840
    s_add_u32 s{sCNT}, s{sCNT}, 1
    s_cmp_lt_u32 s{sCNT}, 16
    s_cbranch_scc1 {L('mloop')}
    v_mov_b32 v{T0+7}, v{MX}
    v_mov_b32 v{T0+8}, v{MX+1}
    s_nop 1
    v_permlane32_swap_b32 v{T0+7}, v{MX}
    v_permlane32_swap_b32 v{T0+8}, v{MX+1}
    v_max_f32 v{MX}, v{MX}, v{T0+7}
    v_max_f32 v{MX+1}, v{MX+1}, v{T0+8}
    """)
    for qs in range(2):
        for i in range(16): A(f"v_sub_f32 v{CI+16*qs+i}, 0, v{MX+qs}")
    A(f"s_branch {L('start')}")
    A.label(L('special'))
    A(f"""
    s_cmp_lg_u32 s{sMODE}, 0
    s_cbranch_scc1 {L('sp_plain')}
    s_cmp_eq_u32 s{sCNT}, 0
    s_cbranch_scc1 {L('sp0')}
    s_cmp_eq_u32 s{sCNT}, 1
    s_cbranch_scc1 {L('sp1')}
    s_cmp_eq_u32 s{sCNT}, 5
    s_cbranch_scc1 {L('sp5')}
    """)
    A.label(L('sp_plain'))
    A("s_waitcnt vmcnt(0)")
    A.label(L('sp_ring'))
    A(f"""
    s_barrier
    s_sub_u32 s14, s{sCNT}, 1
    s_cmp_lt_u32 s14, 4
    s_cbranch_scc0 {L('back')}
    s_mul_i32 s14, s14, {SLOT}
    s_add_u32 s14, s14, s{sM0}
    """)
    dma(sreg=14)
    A(f"""
    s_cmp_lg_u32 s{sMODE}, 0
    s_cbranch_scc1 {L('back')}
    s_cmp_eq_u32 s{sCNT}, 2
    s_cbranch_scc1 {L('sp2')}
    s_cmp_lg_u32 s{sW}, 0
    s_cbranch_scc1 {L('back')}
    s_cmp_eq_u32 s{sCNT}, 3
    s_cbranch_scc1 {L('sp3')}
    s_cmp_eq_u32 s{sCNT}, 4
    s_cbranch_scc0 {L('back')}
    s_mov_b32 s3, {WS_CNT + CP*256}
    v_and_b32 v200, 15, v0
    v_lshl_add_u32 v200, v200, 8, s3
    buffer_load_dword v201, v200, {R(SWS)}, 0 offen sc1
    s_branch {L('back')}
    """)
    A.label(L('sp3'))
    A(f"s_and_b32 s15, s2, 15")
    A(f"s_add_u32 s15, s15, {CP}")
    arrive(A, 15, 200)
    A(f"s_branch {L('back')}")
    A.label(L('sp0'))
    A("s_waitcnt vmcnt(6)")
    A("s_barrier")
    for j in range(8):
        if j == 0: A(f"s_mov_b32 s3, s{sPB}")
        elif j == 4: A(f"s_add_u32 s3, s{sPB}, s{sPJ}")
        else: A(f"s_add_u32 s3, s3, s{sPP}")
        for f in range(4):
            A(f"buffer_load_ushort v{PR+8*f+j}, v{vPA}, {R(SA)}, s3 offen offset:{f*32}")
    A(f"s_branch {L('back')}")
    A.label(L('sp1'))
    A("s_waitcnt vmcnt(32)")
    A(f"s_branch {L('sp_ring')}")
    A.label(L('sp2'))
    for f in range(4):
        for j in range(4):
            A(f"v_lshl_or_b32 v{PR+8*f+j}, v{PR+8*f+2*j+1}, 16, v{PR+8*f+2*j}")
        A(f"""
        s_add_u32 s3, s{sPD0}, {f}
        s_mul_i32 s14, s3, s10
        s_lshr_b32 s14, s14, 16
        s_mul_i32 s15, s14, s11
        s_sub_u32 s3, s3, s15
        s_mul_i32 s14, s14, s12
        s_lshl_b32 s3, s3, 10
        s_add_u32 s3, s3, s14
        s_add_u32 s3, s3, s13
        buffer_store_dwordx4 {v(PR+8*f,4)}, v{vL16}, {R(SWS)}, s3 offen {STF}
        """)
    A(f"s_branch {L('back')}")
    A.label(L('sp5'))
    A(f"""
    s_waitcnt vmcnt(0)
    s_cmp_lg_u32 s{sW}, 0
    s_cbranch_scc1 {L('sp5b')}
    v_cmp_le_u32 vcc, 16, v201
    s_cmp_eq_u64 vcc, -1
    s_cbranch_scc1 {L('sp5b')}
    s_mov_b32 s15, {CP}
    """)
    poll(A, 15, 16, 16, 200)
    A.label(L('sp5b'))
    A("s_barrier")
    A(f"""
    s_mul_i32 s14, s{sCT8}, 102400
    s_lshl_b32 s15, s{sW}, 10
    s_add_u32 s14, s14, s15
    s_add_u32 s14, s14, {WS_WO + 30720}
    s_add_u32 s15, s15, {WO_LDS + 30720}
    """)
    for k in range(9):
        if k == 8:
            A(f"s_cmp_ge_u32 s{sW}, 6")
            A(f"s_cbranch_scc1 {L('sp5c')}")
        A(f"s_add_u32 m0, s15, {k*8192}")
        A("s_nop 0")
        A(f"buffer_load_dwordx4 v{vL16}, {R(SWS)}, s14 offen {LDF} lds")
        A(f"s_add_u32 s14, s14, 8192")
    A.label(L('sp5c'))
    A(f"""
    s_lshr_b32 s3, s2, 3
    s_lshl_b32 s3, s3, 3
    s_add_u32 s3, s3, s{sW}
    s_bfe_u32 s14, s2, 0x10002
    s_lshl_b32 s14, s14, 8
    s_add_u32 s3, s3, s14
    s_mul_i32 s14, s3, 7680
    s_add_u32 s14, s14, {WS_WGU}
    s_mul_i32 s15, s3, 3840
    s_add_u32 s15, s15, {WS_WD}
    v_min_u32 v200, 59, v0
    v_lshlrev_b32 v200, 7, v200
    buffer_load_dword v202, v200, {R(SWS)}, s14 offen {LDF}
    v_min_u32 v200, 29, v0
    v_lshlrev_b32 v200, 7, v200
    buffer_load_dword v203, v200, {R(SWS)}, s15 offen {LDF}
    s_cmp_lg_u32 s{sKH}, 0
    s_cbranch_scc1 {L('back')}
    """)
    srd(A, SA, pX, X_BYTES)
    A(f"""
    s_lshl_b32 s3, s{sRT64}, 2
    s_add_u32 s3, s3, s{sQG}
    s_mul_i32 s3, s3, {16*1280}
    s_mul_i32 s14, s{sCT8}, 160
    s_add_u32 s3, s3, s14
    v_and_b32 v200, 15, v0
    v_mul_u32_u24 v200, 1280, v200
    v_lshrrev_b32 v201, 4, v0
    v_lshl_add_u32 v200, v201, 3, v200
    """)
    for mt in range(5):
        A(f"buffer_load_dwordx2 {v(XR+2*mt,2)}, v200, {R(SA)}, s3 offen offset:{mt*32}")
    A(f"s_branch {L('back')}")
    A.label(L('done'))
    A.stamp(6)
    A(f"""
    s_cmp_lg_u32 s{sW}, 0
    s_cbranch_scc1 {L('s2a')}
    s_lshl_b32 s15, s{sQB}, 1
    s_add_u32 s15, s15, s{sODD}
    s_add_u32 s15, s15, {C2}
    """)
    arrive(A, 15, 200)
    A.label(L('s2a'))
```

```python
from mcommon import *
from m2 import XR, WO_LDS, sRT64, sCT8
sNT, sKH = 43, 44
sRT128, sCT16 = 40, 41
HRING, WRING = 0, 65536

def gen_p3(A):
    L = lambda x: f"L3_{x}"
    vL16 = 2
    vWA, vWB, vOX = 4, 5, 6
    OF = 32
    WF = 72
    ACC = 112
    A(f"""
    s_cmp_eq_u32 s{sW}, 0
    s_cbranch_scc1 {L('poll')}
    s_cmp_eq_u32 s{sW}, 7
    s_cbranch_scc1 {L('setup')}
    s_sub_u32 s15, s{sW}, 1
    s_mul_i32 s15, s15, 5120
    s_mul_i32 s14, s{sCT8}, 102400
    s_add_u32 s14, s14, s15
    s_add_u32 s14, s14, {WS_WO}
    """)
    for k in range(5):
        A(f"s_add_u32 m0, s15, {WO_LDS + k*1024}")
        A("s_nop 0")
        A(f"buffer_load_dwordx4 v{vL16}, {R(SWS)}, s14 offen {LDF} lds")
        A("s_add_u32 s14, s14, 1024")
    A(f"s_branch {L('setup')}")
    A.label(L('poll'))
    A(f"""
    s_lshr_b32 s15, s{sRT64}, 2
    s_lshl_b32 s15, s15, 1
    s_add_u32 s15, s15, {C2}
    """)
    poll(A, 15, 2, 16, 200)
    A.label(L('setup'))
    sOO, sTG = 46, 47
    A(f"""
    s_lshl_b32 s{sTG}, s{sRT64}, 2
    s_add_u32 s{sTG}, s{sTG}, s{sNT}
    s_mul_i32 s{sOO}, s{sTG}, 20480
    s_add_u32 s{sOO}, s{sOO}, {WS_O}
    s_lshl_b32 s3, s{sKH}, 13
    s_add_u32 s48, s{sOO}, s3
    s_add_u32 s49, s48, 4096
    s_lshl_b32 s3, s{sKH}, 11
    s_add_u32 s50, s{sOO}, s3
    s_add_u32 s50, s50, 16384
    v_lshrrev_b32 v7, 4, v0
    v_and_b32 v8, 15, v0
    v_lshlrev_b32 v{vOX}, 8, v7
    v_lshl_add_u32 v{vOX}, v8, 3, v{vOX}
    s_mul_i32 s3, s{sKH}, {7*5120}
    s_add_u32 s3, s3, {WO_LDS + 30720}
    v_add_u32 v{vWA}, s3, v{vL16}
    s_mul_i32 s3, s{sKH}, {3*5120}
    s_add_u32 s3, s3, {WO_LDS}
    v_add_u32 v{vWB}, s3, v{vL16}
    s_and_b32 s3, s2, 3
    s_lshl_b32 s3, s3, 2
    s_bfe_u32 s14, s2, 0x20003
    s_add_u32 s{sRT128}, s3, s14
    s_bfe_u32 s3, s2, 0x10002
    s_lshl_b32 s3, s3, 3
    s_lshr_b32 s14, s2, 5
    s_add_u32 s{sCT16}, s3, s14
    s_waitcnt vmcnt(0)
    s_barrier
    """)
    A.stamp(8)
    for i in range(8):
        A(f"buffer_load_dwordx4 {v(OF+4*i,4)}, v{vL16}, {R(SWS)}, s{48 + (i>>2)} offen offset:{(i&3)*1024} {LDF}")
    for e in range(2):
        for u in range(2):
            A(f"buffer_load_dwordx2 {v(OF+32+4*e+2*u,2)}, v{vOX}, {R(SWS)}, s50 offen offset:{e*1024 + u*128} {LDF}")
    def wreads(i):
        return [f"ds_read_b128 {v(WF+20*(i&1)+4*mt,4)}, v{vWA if i < 7 else vWB} offset:{(i if i < 7 else i-7)*5120 + mt*1024}" for mt in range(5)]
    for x in wreads(0): A(x)
    for i in range(10):
        n = (11 - i) if i < 8 else (2 if i == 8 else 0)
        A(f"s_waitcnt vmcnt({n}) lgkmcnt(0)")
        r = wreads(i+1) if i < 9 else [None]*5
        for mt in range(5):
            acc = v(ACC+4*mt, 4)
            A(f"v_mfma_f32_16x16x32_bf16 {acc}, {v(WF+20*(i&1)+4*mt,4)}, {v(OF+4*i,4)}, {'0' if i==0 else acc}")
            if r[mt]: A(r[mt])
    A(f"""
    s_mul_i32 s3, s{sNT}, 5120
    v_add_u32 v20, s3, v{vL16}
    s_cmp_eq_u32 s{sKH}, 0
    s_cbranch_scc1 {L('fin')}
    s_nop 4
    """)
    for mt in range(5): A(f"ds_write_b128 v20, {v(ACC+4*mt,4)} offset:{mt*1024}")
    A("""
    s_waitcnt lgkmcnt(0)
    s_barrier
    """)
    A(f"""
    s_mul_i32 s46, s{sNT}, 6144
    s_mul_i32 s47, s{sCT16}, 245760
    s_add_u32 s47, s47, s46
    s_add_u32 s47, s47, {WS_WGU}
    v_add_u32 v4, s47, v{vL16}
    """)
    NPRE = int(os.environ.get("NPRE3", "1"))
    for c in range(4):
        if c == NPRE: A("s_barrier")
        for i in range(6):
            A(f"s_add_u32 m0, s46, {WRING + c*24576 + i*1024}")
            A(f"s_mov_b32 s3, {c*24576 + i*1024}")
            A(f"buffer_load_dwordx4 v4, {R(SWS)}, s3 offen {LDF} lds")
    if NPRE >= 4: A("s_barrier")
    A(f"s_branch {L('done')}")
    A.label(L('fin'))
    A(f"""
    s_mul_i32 s14, s{sTG}, 20480
    s_mul_i32 s3, s{sCT8}, 2560
    s_add_u32 s14, s14, s3
    s_add_u32 s14, s14, {WS_H}
    v_and_b32 v21, 1, v7
    v_lshlrev_b32 v21, 9, v21
    v_lshrrev_b32 v22, 1, v7
    v_lshl_add_u32 v21, v22, 8, v21
    v_lshl_add_u32 v21, v8, 4, v21
    s_lshl_b32 s15, s{sTG}, 10
    s_lshl_b32 s3, s{sCT8}, 7
    s_add_u32 s15, s15, s3
    s_add_u32 s15, s15, {WS_ST}
    v_lshlrev_b32 v22, 3, v8
    v_mov_b32 v28, 0
    v_mov_b32 v29, 0
    s_mov_b32 s53, 0x3f803f80
    """)
    for mt in range(5):
        A(f"""
        v_lshlrev_b32 v{OF+4*mt}, 16, v{XR+2*mt}
        v_and_b32 v{OF+4*mt+1}, 0xffff0000, v{XR+2*mt}
        v_lshlrev_b32 v{OF+4*mt+2}, 16, v{XR+2*mt+1}
        v_and_b32 v{OF+4*mt+3}, 0xffff0000, v{XR+2*mt+1}
        """)
    for r in range(20): A(f"v_add_f32 v{ACC+r}, v{ACC+r}, v{OF+r}")
    A("s_barrier")
    for mt in range(5): A(f"ds_read_b128 {v(WF+4*mt,4)}, v20 offset:{mt*1024}")
    for mt in range(5):
        A(f"s_waitcnt lgkmcnt({4-mt})")
        for j in range(4): A(f"v_add_f32 v{ACC+4*mt+j}, v{ACC+4*mt+j}, v{WF+4*mt+j}")
        A(f"v_cvt_pk_bf16_f32 v{XR+2*mt}, v{ACC+4*mt}, v{ACC+4*mt+1}")
        A(f"v_cvt_pk_bf16_f32 v{XR+2*mt+1}, v{ACC+4*mt+2}, v{ACC+4*mt+3}")
    for r in range(10): A(f"v_mov_b32 v{OF+r}, v{XR+r}")
    A(f"v_mov_b32 v{OF+10}, v{XR+8}")
    A(f"v_mov_b32 v{OF+11}, v{XR+9}")
    for p in range(3):
        if p == 2: A("s_nop 0")
        A(f"v_permlane16_swap_b32 v{OF+4*p}, v{OF+4*p+2}")
        A(f"v_permlane16_swap_b32 v{OF+4*p+1}, v{OF+4*p+3}")
    A(f"""
    buffer_store_dwordx4 {v(OF,4)}, v21, {R(SWS)}, s14 offen {STF}
    buffer_store_dwordx4 {v(OF+4,4)}, v21, {R(SWS)}, s14 offen offset:1024 {STF}
    s_mov_b32 exec_lo, 0xffff
    s_mov_b32 exec_hi, 0xffff
    buffer_store_dwordx4 {v(OF+8,4)}, v21, {R(SWS)}, s14 offen offset:2048 {STF}
    s_mov_b64 exec, -1
    """)
    for r in range(10):
        A(f"v_dot2_f32_bf16 v28, v{XR+r}, s53, v28")
        A(f"v_dot2_f32_bf16 v29, v{XR+r}, v{XR+r}, v29")
    A(f"""
    s_nop 2
    v_mov_b32 v30, v28
    v_mov_b32 v31, v29
    s_nop 1
    v_permlane32_swap_b32 v30, v28
    v_permlane32_swap_b32 v31, v29
    v_add_f32 v28, v28, v30
    v_add_f32 v29, v29, v31
    v_mov_b32 v30, v28
    v_mov_b32 v31, v29
    s_nop 1
    v_permlane16_swap_b32 v30, v28
    v_permlane16_swap_b32 v31, v29
    v_add_f32 v28, v28, v30
    v_add_f32 v29, v29, v31
    s_mov_b32 exec_lo, 0xffff
    s_mov_b32 exec_hi, 0
    buffer_store_dwordx2 v[28:29], v22, {R(SWS)}, s15 offen {STF}
    s_mov_b64 exec, -1
    s_waitcnt vmcnt(0)
    s_barrier
    """)
    A.stamp(9)
    A(f"""
    s_cmp_lg_u32 s{sW}, 0
    s_cbranch_scc1 {L('done')}
    s_lshr_b32 s15, s{sRT64}, 1
    s_add_u32 s15, s15, {C3}
    """)
    arrive(A, 15, 200)
    A(f"s_add_u32 s15, s{sRT128}, {C3}")
    poll(A, 15, 1, 16, 200)
    A.label(L('done'))

def gen_p4(A):
    L = lambda x: f"L4_{x}"
    vL16 = 2
    A(f"s_cmp_lt_u32 s{sW}, 4")
    A(f"s_cbranch_scc1 {L('compute')}")
    sMH = 47
    A(f"""
    s_lshl_b32 s3, s{sRT128}, 2
    s_add_u32 s3, s3, s{sNT}
    s_mul_i32 s3, s3, 40960
    s_add_u32 s3, s3, {WS_H}
    v_add_u32 v5, s3, v{vL16}
    s_lshl_b32 s{sMH}, s{sNT}, 11
    s_barrier
    """)
    def issueH(c):
        for ksl in range(2):
            for t in range(2):
                A(f"s_add_u32 m0, s{sMH}, {HRING + (c%4)*16384 + ksl*8192 + t*1024}")
                A(f"s_mov_b32 s3, {t*20480 + (2*c+ksl)*1024}")
                A(f"buffer_load_dwordx4 v5, {R(SWS)}, s3 offen {LDF} lds")
    def issueW(c):
        for i in range(6):
            A(f"s_add_u32 m0, s46, {WRING + (c%4)*24576 + i*1024}")
            A(f"s_mov_b32 s3, {c*24576 + i*1024}")
            A(f"buffer_load_dwordx4 v4, {R(SWS)}, s3 offen {LDF} lds")
    for c in range(4): issueH(c)
    issued = [4]*4
    for c in range(10):
        n = sum(issued[c+1:])
        A(f"s_waitcnt vmcnt({n})")
        A("s_barrier")
        if 1 <= c <= 6:
            issueH(c+3); issueW(c+3); issued.append(10)
    A("s_barrier")
    A(f"""
    s_mul_i32 s46, s{sNT}, 10240
    s_lshr_b32 s3, s{sNT}, 1
    s_mul_i32 s3, s3, {24*5120}
    s_and_b32 s14, s{sNT}, 1
    s_mul_i32 s14, s14, 10240
    s_add_u32 s3, s3, s14
    s_mul_i32 s14, s{sCT8}, 245760
    s_add_u32 s3, s3, s14
    s_add_u32 s3, s3, {WS_WD}
    v_add_u32 v4, s3, v{vL16}
    """)
    for st in range(4):
        for i in range(10):
            A(f"s_add_u32 m0, s46, {st*40960 + i*1024}")
            A(f"s_mov_b32 s3, {st*20480 + i*1024}")
            A(f"buffer_load_dwordx4 v4, {R(SWS)}, s3 offen {LDF} lds")
        if st == int(os.environ.get("NPRE4", "1")) - 1: A("s_barrier")
    A(f"s_branch {L('done')}")
    A.label(L('compute'))
    sWR, sWC = 45, 46
    vHB, vHC, vWBs, vWC_ = 4, 5, 6, 7
    HF = 16; WA = 48; WB = 60; CS = 72; ACC = 96; STR = 192
    A(f"""
    s_lshr_b32 s{sWR}, s{sW}, 1
    s_and_b32 s{sWC}, s{sW}, 1
    s_lshl_b32 s3, s{sWR}, 12
    v_add_u32 v{vHB}, s3, v{vL16}
    s_mul_i32 s3, s{sWC}, 3072
    s_add_u32 s3, s3, {WRING}
    v_add_u32 v{vWBs}, s3, v{vL16}
    s_mul_i32 s3, s{sCT16}, 384
    s_mul_i32 s14, s{sWC}, 192
    s_add_u32 s3, s3, s14
    s_add_u32 s3, s3, {WS_CS}
    s_add_u32 s14, s3, 6144
    v_lshrrev_b32 v10, 4, v0
    v_and_b32 v11, 15, v0
    v_lshlrev_b32 v12, 4, v10
    """)
    for m in range(2):
        for mt in range(3):
            A(f"buffer_load_dwordx4 {v(CS+12*m+4*mt,4)}, v12, {R(SWS)}, s{14 if m else 3} offen offset:{mt*64} {LDF}")
    A(f"""
    s_lshl_b32 s15, s{sRT128}, 1
    s_add_u32 s15, s15, s{sWR}
    s_lshl_b32 s15, s15, 12
    s_add_u32 s15, s15, {WS_ST}
    v_lshlrev_b32 v12, 8, v10
    v_lshl_add_u32 v12, v11, 3, v12
    s_barrier
    """)
    A.stamp(10)
    for nt in range(4):
        for u in range(2):
            A(f"buffer_load_dwordx2 {v(STR+4*nt+2*u,2)}, v12, {R(SWS)}, s15 offen offset:{nt*1024 + u*128} {LDF}")
    def setaddr(c):
        A(f"v_add_u32 v{vHC}, {HRING + (c%4)*16384}, v{vHB}")
        A(f"v_add_u32 v{vWC_}, {(c%4)*24576}, v{vWBs}")
    def rdH(ksl, f): return [f"ds_read_b128 {v(HF+16*f+4*nt,4)}, v{vHC} offset:{ksl*8192 + nt*1024}" for nt in range(4)]
    def rdW(ksl, m): return [f"ds_read_b128 {v((WB if m else WA)+4*mt,4)}, v{vWC_} offset:{ksl*12288 + m*6144 + mt*1024}" for mt in range(3)]
    def mf(m, f, first, r):
        b = WB if m else WA
        k = 0
        for mt in range(3):
            for nt in range(4):
                acc = v(ACC + 48*m + 16*mt + 4*nt, 4)
                A(f"v_mfma_f32_16x16x32_bf16 {acc}, {v(b+4*mt,4)}, {v(HF+16*f+4*nt,4)}, {'0' if first else acc}")
                if k < len(r): A(r[k])
                k += 1
    setaddr(0)
    A("s_barrier")
    A.stamp(11)
    for x in rdH(0, 0) + rdW(0, 0): A(x)
    for c in range(10):
        A("s_waitcnt lgkmcnt(0)")
        mf(0, 0, c == 0, rdW(0, 1) + rdH(1, 1))
        A("s_waitcnt lgkmcnt(4)")
        mf(1, 0, c == 0, rdW(1, 0))
        A("s_waitcnt lgkmcnt(0)")
        mf(0, 1, False, rdW(1, 1))
        A("s_waitcnt lgkmcnt(0)")
        if c < 9: setaddr(c+1)
        A("s_barrier")
        mf(1, 1, False, (rdW(0, 0) + rdH(0, 0)) if c < 9 else [])
    A.stamp(12)
    A("s_waitcnt vmcnt(0)")
    MN = 16
    for nt in range(4):
        A(f"v_add_f32 v{STR+4*nt}, v{STR+4*nt}, v{STR+4*nt+2}")
        A(f"v_add_f32 v{STR+4*nt+1}, v{STR+4*nt+1}, v{STR+4*nt+3}")
    for sw in ("v_permlane32_swap_b32", "v_permlane16_swap_b32"):
        for nt in range(4):
            A(f"v_mov_b32 v{STR+4*nt+2}, v{STR+4*nt}")
            A(f"v_mov_b32 v{STR+4*nt+3}, v{STR+4*nt+1}")
        A("s_nop 0")
        for nt in range(4):
            A(f"{sw} v{STR+4*nt+2}, v{STR+4*nt}")
            A(f"{sw} v{STR+4*nt+3}, v{STR+4*nt+1}")
        for nt in range(4):
            A(f"v_add_f32 v{STR+4*nt}, v{STR+4*nt}, v{STR+4*nt+2}")
            A(f"v_add_f32 v{STR+4*nt+1}, v{STR+4*nt+1}, v{STR+4*nt+3}")
    for nt in range(4):
        b = STR + 4*nt
        A(f"""
        v_mul_f32 v{b}, {hex(f32bits(1.0/640))}, v{b}
        v_mul_f32 v{b+1}, {hex(f32bits(1.0/640))}, v{b+1}
        v_fma_f32 v{b+1}, -v{b}, v{b}, v{b+1}
        v_max_f32 v{b+1}, 0, v{b+1}
        v_add_f32 v{b+1}, {hex(f32bits(1e-5))}, v{b+1}
        v_rcp_f32 v{b+1}, v{b+1}
        """)
    A(f"""
    s_lshl_b32 s3, s{sRT128}, 3
    s_lshl_b32 s14, s{sWR}, 2
    s_add_u32 s3, s3, s14
    s_mul_i32 s3, s3, 49152
    s_mul_i32 s14, s{sCT16}, 3072
    s_add_u32 s3, s3, s14
    s_mul_i32 s14, s{sWC}, 1536
    s_add_u32 s3, s3, s14
    s_add_u32 s3, s3, {WS_G}
    s_add_u32 s14, s3, {2*49152}
    v_and_b32 v12, 1, v10
    v_mul_u32_u24 v12, 49152, v12
    v_lshrrev_b32 v13, 1, v10
    v_lshl_add_u32 v12, v13, 8, v12
    v_lshl_add_u32 v12, v11, 4, v12
    """)
    for mt in range(3):
        for p in range(2):
            for q in range(2):
                nt = 2*p + q
                g = ACC + 16*mt + 4*nt; u = g + 48
                for j in range(4):
                    A(f"v_fma_f32 v{g+j}, -v{STR+4*nt}, v{CS+4*mt+j}, v{g+j}")
                    A(f"v_fma_f32 v{u+j}, -v{STR+4*nt}, v{CS+12+4*mt+j}, v{u+j}")
                for j in range(4):
                    A(f"v_max_f32 v{g+j}, 0, v{g+j}")
                    A(f"v_mul_f32 v{u+j}, v{STR+4*nt+1}, v{u+j}")
                for j in range(4):
                    A(f"v_mul_f32 v{u+j}, v{g+j}, v{u+j}")
            g0 = ACC + 16*mt + 8*p; u0 = g0 + 48
            for k in range(4): A(f"v_cvt_pk_bf16_f32 v{g0+k}, v{u0+2*k}, v{u0+2*k+1}")
            A("s_nop 0")
            A(f"v_permlane16_swap_b32 v{g0}, v{g0+2}")
            A(f"v_permlane16_swap_b32 v{g0+1}, v{g0+3}")
            A(f"buffer_store_dwordx4 {v(g0,4)}, v12, {R(SWS)}, s{14 if p else 3} offen offset:{mt*512} {STF}")
    A("s_waitcnt vmcnt(0)")
    A("s_barrier")
    A.stamp(13)
    A(f"""
    s_cmp_lg_u32 s{sW}, 0
    s_cbranch_scc1 {L('done')}
    s_add_u32 s15, s{sRT128}, {C4}
    """)
    arrive(A, 15, 200)
    A(f"""
    s_lshr_b32 s15, s{sRT64}, 1
    s_add_u32 s15, s15, {C4}
    """)
    poll(A, 15, 1, 16, 200)
    A.label(L('done'))

def gen_p5(A):
    L = lambda x: f"L5_{x}"
    vL16 = 2
    vWD, vWB, vWC = 4, 5, 6
    GF = 32; WF = 128; ACC = 168
    sGO, sM0 = 46, 47
    srd(A, SA, pOUT, X_BYTES)
    A(f"""
    s_lshl_b32 s50, s{sRT64}, 2
    s_add_u32 s50, s50, s{sNT}
    s_lshl_b32 s{sGO}, s50, 1
    s_add_u32 s{sGO}, s{sGO}, s{sKH}
    s_mul_i32 s{sGO}, s{sGO}, 24576
    s_add_u32 s{sGO}, s{sGO}, {WS_G}
    s_mul_i32 s{sM0}, s{sW}, 5120
    s_mul_i32 s3, s{sKH}, 24
    s_add_u32 s3, s3, s{sNT}
    s_mul_i32 s3, s3, 5120
    s_mul_i32 s14, s{sCT8}, 245760
    s_add_u32 s3, s3, s14
    s_add_u32 s3, s3, {WS_WD}
    v_add_u32 v{vWD}, s3, v{vL16}
    s_mul_i32 s3, s{sKH}, 20480
    v_add_u32 v{vWB}, s3, v{vL16}
    s_cmp_eq_u32 s{sKH}, 0
    s_cbranch_scc1 {L('hasH')}
    """)
    for r in range(10): A(f"v_mov_b32 v{XR+r}, 0")
    A.label(L('hasH'))
    for mt in range(5):
        A(f"""
        v_lshlrev_b32 v{ACC+4*mt}, 16, v{XR+2*mt}
        v_and_b32 v{ACC+4*mt+1}, 0xffff0000, v{XR+2*mt}
        v_lshlrev_b32 v{ACC+4*mt+2}, 16, v{XR+2*mt+1}
        v_and_b32 v{ACC+4*mt+3}, 0xffff0000, v{XR+2*mt+1}
        """)
    A("s_waitcnt vmcnt(0)")
    A("s_barrier")
    A.stamp(14)
    q = []
    def gload(i):
        if i % 4 == 0 and i: A(f"s_add_u32 s{sGO}, s{sGO}, 4096")
        A(f"buffer_load_dwordx4 {v(GF+4*i,4)}, v{vL16}, {R(SWS)}, s{sGO} offen offset:{(i%4)*1024} {LDF}")
        q.append(('g', i))
    def wdma(st):
        for i in range(5):
            A(f"s_add_u32 m0, s{sM0}, {(st%4)*40960 + i*1024}")
            A(f"s_mov_b32 s3, {st*20480 + i*1024}")
            A(f"buffer_load_dwordx4 v{vWD}, {R(SWS)}, s3 offen {LDF} lds")
            q.append(('w', st))
    def after(key):
        idx = max(k for k, e in enumerate(q) if e == key)
        return len(q) - 1 - idx
    G0 = 16
    for i in range(G0): gload(i)
    def wreads(i):
        st, ksl = i // 4, i % 4
        return [f"ds_read_b128 {v(WF+20*(i&1)+4*mt,4)}, v{vWC} offset:{((st%4)&1)*40960 + ksl*5120 + mt*1024}" for mt in range(5)]
    A(f"v_mov_b32 v{vWC}, v{vWB}")
    for x in wreads(0): A(x)
    for i in range(24):
        st, ksl = i // 4, i % 4
        n = after(('g', i))
        last = (ksl == 3)
        if last and st + 1 in (4, 5): n = min(n, after(('w', st + 1)))
        A(f"s_waitcnt vmcnt({n}) lgkmcnt(0)")
        if last and st in (0, 1, 3, 4):
            A("s_barrier")
            if st in (0, 1):
                wdma(st + 4)
                for k in range(4): gload(G0 + 4*st + k)
        if last and st in (1, 3): A(f"v_add_u32 v{vWC}, {81920 if st == 1 else 0}, v{vWB}")
        r = wreads(i+1) if i < 23 else [None]*5
        for mt in range(5):
            acc = v(ACC+4*mt, 4)
            A(f"v_mfma_f32_16x16x32_bf16 {acc}, {v(WF+20*(i&1)+4*mt,4)}, {v(GF+4*i,4)}, {acc}")
            if r[mt]: A(r[mt])
    A.stamp(15)
    PITCH = 336; RED = 81920
    A(f"""
    v_and_b32 v20, 15, v0
    v_lshrrev_b32 v21, 4, v0
    s_lshl_b32 s3, s{sW}, 4
    v_add_u32 v20, s3, v20
    v_mul_u32_u24 v20, {PITCH}, v20
    v_lshl_add_u32 v20, v21, 4, v20
    v_add_u32 v20, {RED}, v20
    s_lshl_b32 s3, s{sW}, 6
    v_add_u32 v22, s3, v0
    """)
    for mt in range(5): A(f"ds_write_b128 v20, {v(ACC+4*mt,4)} offset:{mt*64}")
    def item(vi, vl, vg):
        A(f"""
        v_mul_u32_u24 v23, 6554, v{vi}
        v_lshrrev_b32 v23, 16, v23
        v_mul_u32_u24 v24, 10, v23
        v_sub_u32 v24, v{vi}, v24
        v_mul_u32_u24 v{vl}, {PITCH}, v23
        v_lshl_add_u32 v{vl}, v24, 5, v{vl}
        v_add_u32 v{vl}, {RED}, v{vl}
        v_mul_u32_u24 v{vg}, 1280, v23
        v_lshl_add_u32 v{vg}, v24, 4, v{vg}
        """)
    item(22, 25, 26)
    A("v_add_u32 v22, 512, v22")
    item(22, 27, 28)
    A(f"""
    s_mul_i32 s14, s{sRT64}, {64*1280}
    s_mul_i32 s3, s{sCT8}, 160
    s_add_u32 s14, s14, s3
    s_waitcnt lgkmcnt(0)
    s_barrier
    """)
    def fin(vl, vg, b):
        A(f"""
        ds_read_b128 {v(b,4)}, v{vl}
        ds_read_b128 {v(b+4,4)}, v{vl} offset:16
        ds_read_b128 {v(b+8,4)}, v{vl} offset:{64*PITCH}
        ds_read_b128 {v(b+12,4)}, v{vl} offset:{64*PITCH+16}
        s_waitcnt lgkmcnt(0)
        """)
        for j in range(8): A(f"v_add_f32 v{b+j}, v{b+j}, v{b+8+j}")
        for j in range(4): A(f"v_cvt_pk_bf16_f32 v{b+j}, v{b+2*j}, v{b+2*j+1}")
        A(f"buffer_store_dwordx4 {v(b,4)}, v{vg}, {R(SA)}, s14 offen")
    fin(25, 26, 32)
    A(f"s_cmp_ge_u32 s{sW}, 2")
    A(f"s_cbranch_scc1 {L('end')}")
    fin(27, 28, 48)
    A.label(L('end'))
```

```python
from asmlib import *
import math, struct, os
NAME = "sequential_preLN__softmax_full_mha__glu_gated_reglu__prompt"
S, D, H, DH, F = 2048, 640, 32, 20, 1536
WS_Q   = 0
WS_K   = WS_Q + 16*163840
WS_V   = WS_K + 16*163840
WS_O   = WS_V + 16*163840
WS_H   = WS_O + 128*20480
WS_ST  = WS_H + 128*20480
WS_CS  = WS_ST + 128*1024
WS_G   = WS_CS + 3072*4
WS_WO  = WS_G + 128*49152
WS_WGU = WS_WO + 8*102400
WS_WD  = WS_WGU + 16*245760
WS_CNT = WS_WD + 8*245760
NCNT = 96
WS_END = WS_CNT + NCNT*256
C1, CP, C2, C3, C4 = 0, 16, 32, 48, 64
X_BYTES = S*D*2; WQKV_BYTES = D*3*D*2; WO_BYTES = D*D*2; WG_BYTES = D*F*2; WD_BYTES = F*D*2
def f32bits(x): return struct.unpack("<I", struct.pack("<f", x))[0]
QSCALE = DH**-0.5 * math.log2(math.e)
OPT = set(os.environ.get("OPT", "").split(","))
STF = "sc1"
LDF = "sc1"
SPIN = 400000

pX, pWQKV, pWO, pWG, pWU, pWD, pOUT, pDBG, pWS = 4, 6, 8, 28, 30, 32, 34, 36, 38
SA, SB_, SWS = 16, 20, 24
sW = 42

def srd(A, sd, sp, nbytes):
    A(f"s_mov_b32 s{sd}, s{sp}")
    A(f"s_mov_b32 s{sd+1}, s{sp+1}")
    A(f"s_mov_b32 s{sd+2}, {nbytes}")
    A(f"s_mov_b32 s{sd+3}, 0x00020000")
def R(x): return f"s[{x}:{x+3}]"

_uid = [0]
def arrive(A, s_idx, vt):
    A(f"""
    s_lshl_b32 s3, s{s_idx}, 8
    s_add_u32 s3, s3, {WS_CNT}
    v_mov_b32 v{vt}, s3
    v_mov_b32 v{vt+1}, 1
    s_mov_b64 exec, 1
    buffer_atomic_add v{vt+1}, v{vt}, {R(SWS)}, 0 offen sc1
    s_mov_b64 exec, -1
    """)
def poll(A, s_idx, n, target, vt):
    _uid[0] += 1; u = _uid[0]
    A(f"""
    s_lshl_b32 s3, s{s_idx}, 8
    s_add_u32 s3, s3, {WS_CNT}
    v_lshl_add_u32 v{vt}, v0, 8, s3
    s_mov_b32 s14, {SPIN}
    s_mov_b64 exec, {(1 << n) - 1}
    """)
    A.label(f"Lpoll{u}")
    A(f"""
    buffer_load_dword v{vt+1}, v{vt}, {R(SWS)}, 0 offen sc1
    s_waitcnt vmcnt(0)
    v_cmp_le_u32 vcc, {target}, v{vt+1}
    s_sub_u32 s14, s14, 1
    s_cmp_eq_u32 s14, 0
    s_cbranch_scc1 Lpolld{u}
    s_cmp_eq_u64 vcc, exec
    s_cbranch_scc0 Lpoll{u}
    """)
    A.label(f"Lpolld{u}")
    A("s_mov_b64 exec, -1")
```

```python
import sys
from mcommon import *
from m1 import gen_entry, gen_p1
from m2 import gen_p2
from m3 import gen_p3, gen_p4, gen_p5
def build(out, stamps=False):
    A = Asm()
    A.STAMPS = stamps
    name = NAME + "_kernel"
    gen_entry(A, name)
    gen_p1(A); gen_p2(A); gen_p3(A); gen_p4(A); gen_p5(A)
    A.endpgm()
    A.label("L_exit")
    A("s_endpgm")
    A.label("L_codeend")
    ref = open(f"cdna_kernels/{NAME}.s.ref").read().split("\n")
    hdr = [l for l in ref if l.startswith(";") and "@launch" not in l]
    txt = "\n".join(hdr) + "\n; @launch grid=(256,1,1) block=(512,1,1) lds=163840\n"
    txt += '.amdgcn_target "amdgcn-amd-amdhsa--gfx950"\n.text\n' + A.text()
    txt += f""".section .rodata,"a"
.p2align 6
.amdhsa_kernel {name}
  .amdhsa_next_free_vgpr 256
  .amdhsa_next_free_sgpr 102
  .amdhsa_accum_offset 256
  .amdhsa_group_segment_fixed_size 0
  .amdhsa_kernarg_size 80
  .amdhsa_user_sgpr_count 2
  .amdhsa_user_sgpr_kernarg_segment_ptr 1
  .amdhsa_system_sgpr_workgroup_id_x 1
.end_amdhsa_kernel
"""
    open(out, "w").write(txt)
    if not stamps:
        print("checker errors:", check(A.text(), name, ids=(0, 13, 61, 100, 130, 181, 200, 228, 255, 256), waves=range(8)))
if __name__ == "__main__":
    tag = sys.argv[1] if len(sys.argv) > 1 else "mega"
    build(f"work/{tag}.s")
    build(f"work/{tag}_rt.s", "rt")
    build(f"work/{tag}_cyc.s", "cyc")
```

```python
import re, sys

class Asm:
    def __init__(self):
        self.lines = []
    def __call__(self, s, *a):
        for l in s.split("\n"):
            l = l.strip()
            if l:
                if l.endswith(":") and " " not in l:
                    self.lines.append(l)
                else:
                    self.lines.append("    " + l)
    STAMPS = False
    kidx = 0
    def stamp(self, i):
        if self.STAMPS == "rt": self(f"s_memrealtime s[{64+2*i}:{65+2*i}]")
        elif self.STAMPS == "cyc": self(f"s_memtime s[{64+2*i}:{65+2*i}]")
        elif self.STAMPS:
            self(f"s_memrealtime s[{64+2*i}:{65+2*i}]")
            self(f"s_memtime s[{80+2*i}:{81+2*i}]")
    SET = []
    def st(self, name):
        order = [0,1,2,3,4,5,6,8,9,10,11,12,13,14,15]
        if name in self.SET: self.stamp(order[self.SET.index(name)])
    def cstamp(self, i):
        if self.STAMPS: self(f"s_memtime s[{64+2*i}:{65+2*i}]")
    def endpgm(self, waitstore=True):
        if self.STAMPS and getattr(self, "DBG", False):
            self("s_mov_b64 exec, -1")
            self("s_waitcnt vmcnt(0)")
            self.stamp(7)
            self("""
            s_waitcnt lgkmcnt(0)
            s_lshl_b32 s58, s2, 3
            s_add_u32 s58, s58, s42
            s_cmp_lg_u32 s58, 800
            s_cbranch_scc1 L_exit
            s_mov_b64 exec, 1
            v_mov_b32 v1, 0
            """)
            for k, i in enumerate([1,2,3,4,5,6,8,9,10,11,12,13,14,15,7]):
                self(f"s_sub_u32 s58, s{64+2*i}, s64")
                self(f"v_mov_b32 v2, s58")
                self(f"global_store_dword v1, v2, s[36:37] offset:{4*(k+1)}")
        elif self.STAMPS:
            self("s_mov_b64 exec, -1")
            if waitstore: self("s_waitcnt vmcnt(0)")
            self.stamp(7)
            self("""
            s_load_dwordx2 s[60:61], s[0:1], 72
            s_waitcnt lgkmcnt(0)
            s_add_u32 s60, s60, 0x2000000
            s_addc_u32 s61, s61, 0
            s_mov_b32 s62, 0x1000000
            s_mov_b32 s63, 0x00020000
            s_lshl_b32 s58, s2, 3
            s_add_u32 s58, s58, s42
            s_lshl_b32 s58, s58, 6
            """)
            self(f"s_add_u32 s58, s58, {self.kidx*131072}")
            self("v_mov_b32 v1, s58")
            self("s_mov_b64 exec, 1")
            for i in range(16):
                self(f"v_mov_b32 v2, s{64+2*i}")
                self(f"buffer_store_dword v2, v1, s[60:63], 0 offen offset:{4*i}")
        self("s_endpgm")
    def label(self, l): self.lines.append(l + ":")
    def c(self, s): self.lines.append("    ; " + s)
    def raw(self, s): self.lines.append(s)
    def text(self): return "\n".join(self.lines) + "\n"

def v(a, n=1): return f"v{a}" if n == 1 else f"v[{a}:{a+n-1}]"
def a(x, n=1): return f"a{x}" if n == 1 else f"a[{x}:{x+n-1}]"
def s(x, n=1): return f"s{x}" if n == 1 else f"s[{x}:{x+n-1}]"

class Alloc:
    def __init__(self, start, limit, name="v"):
        self.p = start; self.limit = limit; self.name = name; self.hi = start
    def get(self, n=1, align=None):
        if align is None: align = 1 if n == 1 else (2 if self.name != "s" else (2 if n == 2 else 4))
        self.p = (self.p + align - 1) // align * align
        r = self.p; self.p += n
        assert self.p <= self.limit, f"out of {self.name} regs: {self.p} > {self.limit}"
        self.hi = max(self.hi, self.p)
        return r
    def mark(self): return self.p
    def reset(self, m): self.p = m

REG = re.compile(r"^(-|\|)?(abs\()?([vas])(\d+|\[(\d+):(\d+)\])\)?\|?$")
def regs_of(tok):
    tok = tok.strip()
    if tok in ("vcc",): return {"vcc"}
    if tok in ("vcc_lo", "vcc_hi"): return {"vcc"}
    if tok in ("exec", "exec_lo", "exec_hi"): return {"exec"}
    if tok == "m0": return {"m0"}
    if tok == "scc": return {"scc"}
    m = REG.match(tok)
    if not m: return set()
    k = m.group(3)
    if m.group(5) is not None:
        return {f"{k}{i}" for i in range(int(m.group(5)), int(m.group(6)) + 1)}
    return {f"{k}{m.group(4)}"}

TRANS = ("v_exp_f32", "v_log_f32", "v_rcp_f32", "v_rsq_f32", "v_sqrt_f32", "v_sin_f32", "v_cos_f32", "v_rcp_iflag_f32")
def mfma_passes(op):
    if "32x32x4_2b" in op: return 16
    if "32x32" in op: return 8
    if "16x16" in op: return 4
    raise Exception("unknown mfma " + op)

class Ins:
    def __init__(self, text, lineno):
        self.text = text; self.lineno = lineno
        t = text.split(";")[0].strip()
        parts = t.split(None, 1)
        self.op = parts[0]
        rest = parts[1] if len(parts) > 1 else ""
        ops = [x.strip() for x in rest.split(",")] if rest else []
        self.mods = ""
        if ops:
            lp = ops[-1].split(None, 1)
            j = []
            depth = 0; cur = ""
            for ch in rest:
                if ch == "[": depth += 1
                if ch == "]": depth -= 1
                if ch == "," and depth == 0:
                    j.append(cur.strip()); cur = ""
                else: cur += ch
            j.append(cur.strip())
            ops = j
            lp = ops[-1].split(None, 1)
            ops[-1] = lp[0]
            if len(lp) > 1: self.mods = lp[1]
        self.ops = ops
        op = self.op
        self.dst = set(); self.src = set(); self.srcC = set(); self.srcAB = set()
        self.cls = None; self.passes = 0; self.nops = 1
        self.storedata = set(); self.wide = False; self.lds_dma = False
        R = [regs_of(o) for o in ops]
        if op.startswith("v_mfma") or op.startswith("v_smfmac"):
            self.cls = "mfma"; self.passes = mfma_passes(op)
            self.dst = R[0]; self.srcAB = R[1] | R[2]
            if op.startswith("v_smfmac"):
                self.srcC = set(R[0]); self.srcAB |= R[3]
            else:
                self.srcC = R[3]
            self.src = self.srcAB | self.srcC
        elif op.startswith("v_"):
            self.cls = "valu"
            base = op.replace("_e32", "").replace("_e64", "").replace("_dpp", "").replace("_sdwa", "")
            self.base = base
            if base.startswith("v_cmp"):
                self.dst = R[0]; self.src = set().union(*R[1:])
                if base.startswith("v_cmpx"): self.dst |= {"exec"}
            elif base in ("v_readfirstlane_b32", "v_readlane_b32"):
                self.dst = R[0]; self.src = set().union(*R[1:])
            elif base.startswith("v_permlane") and "swap" in base:
                self.dst = R[0] | R[1]; self.src = R[0] | R[1]
            elif base in ("v_add_co_u32", "v_sub_co_u32", "v_addc_co_u32", "v_subb_co_u32", "v_mad_u64_u32", "v_div_scale_f32"):
                self.dst = R[0] | R[1]; self.src = set().union(*R[2:])
            elif base == "v_nop":
                pass
            else:
                self.dst = R[0]; self.src = set().union(*R[1:]) if len(R) > 1 else set()
                if base in ("v_fmac_f32", "v_dot2c_f32_bf16", "v_writelane_b32", "v_pk_fmac_f16") or "_dpp" in op or "dpp" in self.mods or "row_" in self.mods or "quad_perm" in self.mods or "UNUSED_PRESERVE" in self.mods:
                    self.src |= R[0]
            self.trans = base in TRANS
            self.dot = base.startswith("v_dot")
            self.dpp = ("_dpp" in op) or ("row_" in self.mods) or ("quad_perm" in self.mods)
        elif op.startswith("ds_"):
            self.cls = "ds"
            if op.startswith("ds_read") or op.startswith("ds_bpermute") or op.startswith("ds_swizzle") or op.startswith("ds_permute") or "_rtn" in op:
                self.dst = R[0]; self.src = set().union(*R[1:])
            else:
                self.src = set().union(*R)
        elif op.startswith("buffer_") or op.startswith("global_"):
            self.cls = "vmem"
            if op in ("buffer_wbl2", "buffer_inv"):
                pass
            elif "lds" in self.mods.split() or op.startswith("global_load_lds"):
                self.lds_dma = True; self.src = set().union(*R) | {"m0"}
            elif "_load" in op:
                self.dst = R[0]; self.src = set().union(*R[1:])
            elif "_store" in op:
                self.src = set().union(*R)
                self.storedata = R[0] if op.startswith("buffer_") else R[1]
                self.wide = op.endswith("x3") or op.endswith("x4")
            elif "_atomic" in op:
                self.src = set().union(*R)
                if "sc0" in self.mods.split(): self.dst = R[0]
            else: raise Exception("vmem? " + text)
        elif op.startswith("s_"):
            self.cls = "salu"
            if op == "s_nop":
                self.nops = int(ops[0], 0) + 1
            elif op.startswith("s_load") or op.startswith("s_buffer_load") or op in ("s_memtime", "s_memrealtime"):
                self.cls = "smem"; self.dst = R[0]; self.src = set().union(*R[1:]) if len(R) > 1 else set()
            elif op in ("s_waitcnt", "s_barrier", "s_endpgm", "s_branch", "s_setprio", "s_sleep") or op.startswith("s_cbranch"):
                pass
            elif op.startswith("s_cmp") or op.startswith("s_bitcmp"):
                self.src = set().union(*R); self.dst = {"scc"}
            elif "saveexec" in op:
                self.dst = R[0] | {"exec", "scc"}; self.src = R[1] | {"exec"}
            else:
                self.dst = R[0]; self.src = set().union(*R[1:]) if len(R) > 1 else set()
        else:
            raise Exception("unknown instr: " + text)

_nc = {}
def need(p, c):
    k = (id(p), id(c))
    r = _nc.get(k)
    if r is None:
        r = _need(p, c); _nc[k] = r
    return r
def _need(p, c):
    n = 0
    pv = {r for r in p.dst if r[0] in "va" and r not in ("vcc",)}
    ps = {r for r in p.dst if r[0] == "s" or r == "vcc"}
    ps.discard("scc")
    if p.cls == "valu":
        if c.cls == "mfma" and (pv & c.src):
            n = max(n, 3 if p.dot else 2)
        if c.cls == "vmem" and (ps & c.src): n = max(n, 5)
        if c.cls == "valu":
            if ps & c.src: n = max(n, 4 if c.base in ("v_readlane_b32", "v_writelane_b32") else 2)
            if c.base in ("v_cndmask_b32", "v_addc_co_u32", "v_subb_co_u32") and "vcc" in ps and "vcc" in c.src: n = max(n, 2)
            if c.base in ("v_readlane_b32", "v_readfirstlane_b32") and (pv & c.src): n = max(n, 1)
            if c.dpp and (pv & c.src): n = max(n, 2)
            if c.base.startswith("v_permlane") and (pv & c.src): n = max(n, 2)
            if p.trans and not c.trans and (pv & c.src): n = max(n, 1)
            if p.dot and (pv & (c.src | c.dst)):
                if not (c.op == p.op and not (pv & (regs_of(c.ops[1]) | regs_of(c.ops[2])))): n = max(n, 3)
            if "exec" in p.dst: n = max(n, 5)
        if p.dot and c.cls in ("vmem", "ds") and (pv & c.src): n = max(n, 3)
        if "exec" in p.dst and c.cls == "mfma": n = max(n, 4)
    if p.cls == "mfma":
        P = p.passes
        if c.cls == "mfma":
            if pv & c.srcC:
                if c.srcC == p.dst and c.passes == P: n = max(n, 0 if P >= 4 else 2)
                else: n = max(n, {2: 4, 4: 6, 8: 10, 16: 18}[P])
            if pv & c.srcAB: n = max(n, {2: 5, 4: 8, 8: 12, 16: 20}[P])
            if (pv & c.dst) and not (pv & c.srcC): n = max(n, {2: 4, 4: 6, 8: 10, 16: 18}[P])
        elif c.cls in ("valu", "vmem", "ds"):
            if pv & (c.src | c.dst): n = max(n, {2: 5, 4: 8, 8: 12, 16: 20}[P])
        if c.cls == "valu" and (p.srcC & c.dst): n = max(n, {2: 1, 4: 3, 8: 7, 16: 15}[P])
    if p.cls == "salu" and "m0" in p.dst and c.lds_dma: n = max(n, 1)
    if p.cls == "vmem" and p.wide and (p.storedata & c.dst):
        n = max(n, 2 if c.cls == "valu" else 1)
    return n

def _val(tok, st):
    tok = tok.strip()
    if re.match(r"^s\d+$", tok): return st.get(tok)
    try:
        return int(tok, 0) & 0xffffffff
    except ValueError:
        return None

def salu_exec(c, st, spin):
    op = c.op; o = c.ops
    st = dict(st)
    M = 0xffffffff
    def setd(x):
        if re.match(r"^s\d+$", o[0]):
            if x is None: st.pop(o[0], None)
            else: st[o[0]] = x & M
    two = {"s_add_u32": lambda a, b: a + b, "s_sub_u32": lambda a, b: a - b, "s_mul_i32": lambda a, b: a * b,
           "s_lshl_b32": lambda a, b: a << (b & 31), "s_lshr_b32": lambda a, b: a >> (b & 31), "s_and_b32": lambda a, b: a & b,
           "s_or_b32": lambda a, b: a | b, "s_xor_b32": lambda a, b: a ^ b,
           "s_bfe_u32": lambda a, b: (a >> (b & 31)) & ((1 << ((b >> 16) & 127)) - 1)}
    cmps = {"s_cmp_eq_u32": lambda a, b: a == b, "s_cmp_lg_u32": lambda a, b: a != b, "s_cmp_lt_u32": lambda a, b: a < b,
            "s_cmp_ge_u32": lambda a, b: a >= b, "s_cmp_gt_u32": lambda a, b: a > b, "s_cmp_le_u32": lambda a, b: a <= b}
    if op == "s_mov_b32":
        x = _val(o[1], st); setd(None if x == spin else x)
    elif op in two:
        a_, b_ = _val(o[1], st), _val(o[2], st)
        setd(None if a_ is None or b_ is None else two[op](a_, b_))
        if op != "s_mul_i32": st.pop("scc", None)
    elif op in cmps:
        a_, b_ = _val(o[0], st), _val(o[1], st)
        if a_ is None or b_ is None: st.pop("scc", None)
        else: st["scc"] = int(cmps[op](a_, b_))
    elif op == "s_cselect_b32":
        if "scc" in st: setd(_val(o[1] if st["scc"] else o[2], st))
        else: setd(None)
    elif op == "s_cmov_b32":
        if "scc" in st:
            if st["scc"]: setd(_val(o[1], st))
        else: setd(None)
    else:
        for r in c.dst: st.pop(r, None)
        if op not in ("s_mov_b64", "s_cselect_b64", "s_nop", "s_waitcnt", "s_barrier", "s_branch", "s_setprio", "s_sleep", "s_getpc_b64") and not op.startswith("s_cbranch"):
            st.pop("scc", None)
    return st

def check(text, entry, ids=(0,), waves=(0,), wreg="s42", spin=400000, verbose=True):
    lines = text.split("\n")
    ins = []; labels = {}
    for i, l in enumerate(lines):
        t = l.split(";")[0].strip()
        if not t: continue
        if t.endswith(":"):
            labels[t[:-1]] = len(ins); continue
        if t.startswith("."): continue
        ins.append(Ins(l.strip(), i + 1))
    errs = set()
    W = 22
    covered = set()
    for wg in ids:
        barc = {}
        for wv in waves:
            seen = set()
            stack = [(labels[entry], (), (), (), {"s2": wg}, 0)]
            steps = 0
            ends = set()
            while stack:
                pc, win, vq, lq, st, nb = stack.pop()
                while True:
                    c = ins[pc]
                    if c.op.startswith("s_cbranch") or c.op == "s_branch":
                        key = (pc, win, vq, lq, tuple(sorted(st.items())), nb)
                        if key in seen: break
                        seen.add(key)
                    steps += 1
                    covered.add(pc)
                    if steps > 2000000: raise Exception("checker: too many states")
                    for (pi, d) in win:
                        n = need(ins[pi], c)
                        if d < n:
                            errs.add(f"HAZARD line {ins[pi].lineno}: '{ins[pi].text}' -> line {c.lineno}: '{c.text}' needs {n} has {d}")
                    use = c.src | c.dst
                    for q, nm in ((vq, "vm"), (lq, "lgkm")):
                        for e in q:
                            if e >= 0 and (ins[e].dst & use):
                                errs.add(f"WAITCNT({nm}) line {ins[e].lineno}: '{ins[e].text}' not waited before line {c.lineno}: '{c.text}'")
                    if c.op == "s_waitcnt":
                        t = c.text.split(";")[0]
                        m = re.search(r"vmcnt\((\d+)\)", t)
                        if m:
                            n = int(m.group(1)); assert n <= 63, c.text
                            vq = vq[len(vq) - n:] if 0 < n < len(vq) else (() if n == 0 else vq)
                        m = re.search(r"lgkmcnt\((\d+)\)", t)
                        if m:
                            n = int(m.group(1)); assert n <= 15, c.text
                            if n == 0: lq = ()
                            else:
                                nd = sum(1 for e in lq if ins[e].cls == "ds"); drop = max(0, nd - n); nl = []
                                for e in lq:
                                    if ins[e].cls == "ds" and drop > 0: drop -= 1
                                    else: nl.append(e)
                                lq = tuple(nl)
                    elif c.cls == "vmem":
                        vq = vq + (pc if c.dst else -1,)
                        while vq and vq[0] == -1: vq = vq[1:]
                    elif c.cls in ("ds", "smem"):
                        lq = lq + (pc,)
                    if c.cls == "salu": st = salu_exec(c, st, spin)
                    elif c.dst:
                        ch = [r for r in c.dst if r in st]
                        if ch or (c.op.startswith("v_readfirstlane") and c.ops[0] == wreg):
                            st = dict(st)
                            for r in ch: st.pop(r)
                            if c.op.startswith("v_readfirstlane") and c.ops[0] == wreg: st[wreg] = wv
                    if c.op == "s_barrier": nb += 1
                    k = c.nops
                    win = tuple((pi, d + k) for (pi, d) in win if d + k < W)
                    if c.dst or c.cls == "mfma" or c.wide: win = win + ((pc, 0),)
                    if c.op == "s_endpgm":
                        ends.add(nb); break
                    if c.op == "s_branch":
                        pc = labels[c.ops[0]]; continue
                    if c.op in ("s_cbranch_scc0", "s_cbranch_scc1") and "scc" in st:
                        if st["scc"] == (1 if c.op.endswith("1") else 0): pc = labels[c.ops[0]]
                        else: pc += 1
                        continue
                    if c.op.startswith("s_cbranch"):
                        stack.append((labels[c.ops[0]], win, vq, lq, st, nb))
                    pc += 1
            barc[wv] = tuple(sorted(ends))
        if len(set(barc.values())) != 1:
            errs.add(f"BARRIER count mismatch wg {wg}: {barc}")
        elif verbose and wg == ids[0]: print("barrier counts", barc[waves[0]])
    unc = [ins[i].lineno for i in range(len(ins)) if i not in covered]
    if verbose and unc: print("uncovered instrs:", len(unc), "first lines", unc[:10])
    for e in sorted(errs)[:14]: print(e)
    return len(errs)
```

```python
from mcommon import *

def gen_entry(A, name):
    A.raw(f".globl {name}")
    A.raw(".p2align 8")
    A.raw(f".type {name},@function")
    A.label(name)
    A("s_cmp_ge_u32 s2, 256")
    A("s_cbranch_scc1 L_exit")
    A.st("start")
    A(f"""
    s_load_dwordx4 s[4:7], s[0:1], 0
    s_load_dwordx8 s[32:39], s[0:1], 48
    s_load_dwordx2 s[8:9], s[0:1], 16
    s_load_dwordx4 s[28:31], s[0:1], 32
    v_lshrrev_b32 v1, 6, v0
    v_and_b32 v0, 63, v0
    v_readfirstlane_b32 s{sW}, v1
    """)

def gen_p1(A):
    L = lambda x: f"L1_{x}"
    PD = int(os.environ.get("PD1", "3"))
    sRT, sCT = 40, 41
    A(f"""
    s_and_b32 s3, s2, 3
    s_lshl_b32 s3, s3, 2
    s_bfe_u32 s14, s2, 0x20003
    s_add_u32 s{sRT}, s3, s14
    s_bfe_u32 s3, s2, 0x10002
    s_lshl_b32 s3, s3, 3
    s_lshr_b32 s14, s2, 5
    s_add_u32 s{sCT}, s3, s14
    """)
    SX, SWQ = SA, SB_
    STAT = 0
    NS = int(os.environ.get('NS1', '4'))
    PREP = 131072
    A(f"s_cmp_eq_u32 s{sCT}, 15")
    A(f"s_cbranch_scc1 {L('spare')}")
    A(f"s_cmp_lt_u32 s{sW}, 4")
    A(f"s_cbranch_scc1 {L('compute')}")
    sLW = 43
    vX0, vX1, vWa = 2, 3, 4
    A(f"""
    s_sub_u32 s{sLW}, s{sW}, 4
    v_lshrrev_b32 v5, 3, v0
    s_lshl_b32 s3, s{sRT}, 2
    s_add_u32 s3, s3, s{sLW}
    s_lshl_b32 s3, s3, 5
    v_add_u32 v5, s3, v5
    v_mul_u32_u24 v5, 1280, v5
    v_and_b32 v6, 7, v0
    v_lshrrev_b32 v7, 4, v0
    v_xor_b32 v6, v6, v7
    v_lshlrev_b32 v6, 4, v6
    v_add_u32 v{vX0}, v5, v6
    v_xor_b32 v6, 64, v6
    v_add_u32 v{vX1}, v5, v6
    s_lshl_b32 s3, s{sLW}, 4
    v_add_u32 v5, s3, v7
    v_mul_u32_u24 v5, 3840, v5
    v_bfe_u32 v6, v0, 2, 2
    v_xor_b32 v6, v6, v7
    v_lshlrev_b32 v6, 6, v6
    v_and_b32 v8, 3, v0
    v_lshlrev_b32 v8, 4, v8
    v_add3_u32 v5, v5, v6, v8
    s_lshl_b32 s3, s{sCT}, 8
    v_add_u32 v{vWa}, s3, v5
    s_lshl_b32 s44, s{sLW}, 12
    s_waitcnt lgkmcnt(0)
    """)
    srd(A, SX, pX, X_BYTES); srd(A, SWQ, pWQKV, WQKV_BYTES); srd(A, SWS, pWS, WS_END)
    sXO, sWO = 47, 48
    A(f"""
    s_and_b32 s3, s{sCT}, 7
    s_mul_i32 s3, s3, 10
    s_lshr_b32 s3, s3, 3
    s_and_b32 s14, s{sRT}, 3
    s_mul_i32 s14, s14, 10
    s_lshr_b32 s14, s14, 2
    s_add_u32 s3, s3, s14
    s_cmp_ge_u32 s3, 10
    s_cselect_b32 s14, 10, 0
    s_sub_u32 s3, s3, s14
    """)
    if "norot1" in OPT: A("s_mov_b32 s3, 0")
    A(f"""
    s_lshl_b32 s{sXO}, s3, 7
    s_mul_i32 s{sWO}, s3, {64*3840}
    """)
    def issue(c):
        st = (c % NS) * 32768
        for i in range(4):
            A(f"s_add_u32 m0, s44, {st + i*1024}")
            A(f"s_add_u32 s45, s{sXO}, {8*i*1280}")
            A(f"buffer_load_dwordx4 v{vX1 if i&1 else vX0}, {R(SX)}, s45 offen lds")
            A(f"s_add_u32 m0, s44, {st + 16384 + i*1024}")
            A(f"s_add_u32 s45, s{sWO}, {4*i*3840}")
            A(f"buffer_load_dwordx4 v{vWa}, {R(SWQ)}, s45 offen lds")
        A(f"""
        s_add_u32 s{sXO}, s{sXO}, 128
        s_add_u32 s{sWO}, s{sWO}, {64*3840}
        s_cmp_eq_u32 s{sXO}, 1280
        s_cmov_b32 s{sXO}, 0
        s_cmov_b32 s{sWO}, 0
        """)
    q = []
    def iss(c):
        issue(c); q.extend([c]*8)
    def after(*tags):
        return len(q) - 1 - max(k for k, e in enumerate(q) if e in tags)
    PD0 = int(os.environ.get("PD0", "2"))
    for c in range(PD0): iss(c)
    A.st("p1iss")
    vAW = 22
    A(f"""
    v_lshrrev_b32 v6, 5, v0
    v_bfe_u32 v5, v0, 2, 2
    v_lshl_add_u32 v7, v6, 3, v5
    v_lshlrev_b32 v7, 8, v7
    v_xor_b32 v5, s{sLW}, v5
    v_lshlrev_b32 v5, 6, v5
    v_bfe_u32 v8, v0, 4, 1
    v_lshlrev_b32 v8, 5, v8
    v_add3_u32 v7, v7, v5, v8
    v_and_b32 v8, 3, v0
    v_lshlrev_b32 v8, 3, v8
    s_mov_b32 s3, 16384
    v_add3_u32 v{vAW}, v7, v8, s3
    v_add_u32 v{vAW+1}, 65536, v{vAW}
    s_mov_b32 s46, 0x3f803f80
    v_mov_b32 v28, 0
    """)
    vPA, vL16, vFL, vRA, vST_ = 10, 11, 12, 13, 9
    A(f"""
    s_lshl_b32 s3, s{sRT}, 2
    s_add_u32 s3, s3, 4
    v_mov_b32 v{vFL}, s3
    v_and_b32 v5, 31, v0
    s_lshl_b32 s3, s{sRT}, 2
    s_add_u32 s3, s3, s{sLW}
    s_lshl_b32 s3, s3, 8
    s_add_u32 s3, s3, {WS_RS}
    v_lshl_add_u32 v{vRA}, v5, 3, s3
    s_lshl_b32 s3, s{sLW}, 7
    s_add_u32 s3, s3, {STAT}
    v_lshl_add_u32 v{vST_}, v5, 2, s3
    """)
    vCs = 28
    vD = 32
    nxt = PD0
    CF = int(os.environ.get("CF", "6")); CK = int(os.environ.get("CK", "8"))
    for c in range(10):
        A(f"s_waitcnt vmcnt({after(c)})")
        A("s_barrier")
        A.st(f"p1b{c}")
        while nxt <= min(9, c + PD): iss(nxt); nxt += 1
        if c == CF:
            A(f"global_load_dword v14, v{vFL}, s[{pDBG}:{pDBG+1}] sc1"); q.append('fl')
        st = c % NS
        o = (st & 1) * 32768; k = st >> 1
        for s_ in range(4):
            for u in range(2):
                A(f"ds_read_b64_tr_b16 {v(vD+4*s_+2*u,2)}, v{vAW+k} offset:{o + s_*4096 + u*1024}")
        for hh in range(2):
            A(f"s_waitcnt lgkmcnt({4 - 4*hh})")
            for j in range(8*hh, 8*hh + 8):
                A(f"v_dot2_f32_bf16 v{vCs}, v{vD+j}, s46, v{vCs}")
        if c == CK:
            A(f"""
            s_waitcnt vmcnt({after('fl')})
            s_mov_b32 s14, {SPIN}
            """)
            A.label(L('fl'))
            A(f"""
            v_readfirstlane_b32 s3, v14
            s_cmp_lg_u32 s3, 0
            s_cbranch_scc1 {L('fl2')}
            global_load_dword v14, v{vFL}, s[{pDBG}:{pDBG+1}] sc1
            s_waitcnt vmcnt(0)
            s_sub_u32 s14, s14, 1
            s_cmp_lg_u32 s14, 0
            s_cbranch_scc1 {L('fl')}
            """)
            A.label(L('fl2'))
            A(f"buffer_load_dwordx2 v[16:17], v{vRA}, {R(SWS)}, 0 offen {LDF}"); q.append('rs')
    A(f"""
    s_nop 2
    v_mov_b32 v31, v{vCs}
    s_nop 1
    v_permlane32_swap_b32 v31, v{vCs}
    v_add_f32 v{vCs}, v31, v{vCs}
    ds_write_b32 v{vST_}, v{vCs} offset:1024
    s_waitcnt vmcnt({after('rs')})
    ds_write_b32 v{vST_}, v16
    ds_write_b32 v{vST_}, v17 offset:512
    s_waitcnt lgkmcnt(0)
    s_barrier
    """)
    A(f"s_branch {L('done')}")
    A.label(L('compute'))
    sWR, sWC = 43, 44
    vAX = 2; vAW = 14; FR = 32; ACC = 64
    A(f"""
    s_lshr_b32 s{sWR}, s{sW}, 1
    s_and_b32 s{sWC}, s{sW}, 1
    v_and_b32 v20, 31, v0
    v_lshrrev_b32 v21, 5, v0
    v_bfe_u32 v22, v0, 1, 3
    v_xor_b32 v22, v22, v21
    v_lshlrev_b32 v22, 4, v22
    v_lshlrev_b32 v23, 7, v20
    s_lshl_b32 s3, s{sWR}, 13
    v_add3_u32 v{vAX}, v23, v22, s3
    """)
    if "nocodepf" not in OPT:
        A(f"""
        s_getpc_b64 s[46:47]
        """)
        A.label("L_pcbase")
        A(f"""
        s_lshl_b32 s3, s{sW}, 13
        v_lshl_add_u32 v128, v0, 7, s3
        """)
        for i in range(2):
            A(f"""
            v_min_u32 v129, L_codeend-L_pcbase-4, v128
            global_load_dword v{254+i}, v129, s[46:47]
            v_add_u32 v128, 32768, v128
            """)
    for s_ in range(1, 4): A(f"v_xor_b32 v{vAX+s_}, {s_*32}, v{vAX}")
    for s_ in range(4): A(f"v_add_u32 v{vAX+4+s_}, 65536, v{vAX+s_}")
    A(f"""
    v_bfe_u32 v22, v0, 2, 2
    v_lshl_add_u32 v23, v21, 3, v22
    v_lshlrev_b32 v23, 8, v23
    s_lshl_b32 s3, s{sWC}, 1
    v_xor_b32 v22, s3, v22
    v_lshlrev_b32 v22, 6, v22
    v_bfe_u32 v24, v0, 4, 1
    v_lshlrev_b32 v24, 5, v24
    v_add3_u32 v23, v23, v22, v24
    v_and_b32 v24, 3, v0
    v_lshlrev_b32 v24, 3, v24
    s_mov_b32 s3, 16384
    v_add3_u32 v{vAW}, v23, v24, s3
    v_xor_b32 v{vAW+1}, 64, v{vAW}
    """)
    for t in range(2): A(f"v_add_u32 v{vAW+2+t}, 65536, v{vAW+t}")
    A("s_waitcnt lgkmcnt(0)")
    srd(A, SWS, pWS, WS_END)
    A(f"""
    s_lshl_b32 s3, s2, 3
    s_add_u32 s3, s3, s{sW}
    s_cmp_lg_u32 s3, 1
    s_cbranch_scc1 {L('nozero')}
    s_mov_b32 s3, {WS_CNT}
    v_lshl_add_u32 v131, v0, 8, s3
    v_mov_b32 v132, 0
    s_mov_b32 s3, 16384
    buffer_store_dword v132, v131, {R(SWS)}, 0 offen sc1
    buffer_store_dword v132, v131, {R(SWS)}, s3 offen sc1
    s_mov_b32 s3, 32768
    buffer_store_dword v132, v131, {R(SWS)}, s3 offen sc1
    s_mov_b32 s3, 49152
    buffer_store_dword v132, v131, {R(SWS)}, s3 offen sc1
    s_waitcnt vmcnt(0)
    v_mov_b32 v133, 1
    s_mov_b64 exec, 1
    global_store_dword v132, v133, s[{pDBG}:{pDBG+1}] sc1
    s_mov_b64 exec, -1
    """)
    A.label(L('nozero'))
    def reads(c, s_, f, part=None):
        st = c % NS; o = (st & 1) * 32768; k = st >> 1
        b = FR + 16*f
        l = [f"ds_read_b128 {v(b,4)}, v{vAX+4*k+s_} offset:{o}",
             f"ds_read_b64_tr_b16 {v(b+8,2)}, v{vAW+2*k} offset:{o + s_*4096}",
             f"ds_read_b64_tr_b16 {v(b+10,2)}, v{vAW+2*k} offset:{o + s_*4096 + 1024}",
             f"ds_read_b128 {v(b+4,4)}, v{vAX+4*k+s_} offset:{o + 4096}",
             f"ds_read_b64_tr_b16 {v(b+12,2)}, v{vAW+2*k+1} offset:{o + s_*4096}",
             f"ds_read_b64_tr_b16 {v(b+14,2)}, v{vAW+2*k+1} offset:{o + s_*4096 + 1024}"]
        return l
    def mfmas(f, first, isV):
        b = FR + 16*f
        l = []
        for (xs, ws) in ((0,0),(1,0),(0,1),(1,1)):
            acc = v(ACC + 16*(2*xs+ws), 16)
            X = v(b+4*xs, 4); W = v(b+8+4*ws, 4)
            cc = "0" if first else acc
            l.append(f"v_mfma_f32_32x32x16_bf16 {acc}, {X}, {W}, {cc}" if isV else f"v_mfma_f32_32x32x16_bf16 {acc}, {W}, {X}, {cc}")
        return l
    def weave(m, r, allin, pi=None):
        A(m[0])
        for x in r[0:3]: A(x)
        if not allin: A("s_waitcnt lgkmcnt(3)")
        A(m[1])
        for x in r[3:6]: A(x)
        if pi is not None: A(f"s_add_u32 m0, s50, {pi*1024}")
        A(m[2])
        if pi is not None: A(f"buffer_load_dwordx4 v{vPL}, {R(SA)}, {PSO[pi]} offen lds")
        A(m[3])
    def mainloop(isV):
        A("s_barrier")
        A.st("p1b0")
        for x in reads(0, 0, 0): A(x)
        for c in range(10):
            for s_ in range(3):
                A("s_waitcnt lgkmcnt(3)")
                pi = None
                weave(mfmas(s_ & 1, c == 0 and s_ == 0, isV), reads(c, s_+1, (s_+1) & 1), False, pi)
            A("s_waitcnt lgkmcnt(0)")
            if c < 9:
                A("s_barrier")
                A.st(f"p1b{c+1}")
                weave(mfmas(1, False, isV), reads(c+1, 0, 0), True)
            else:
                for x in mfmas(1, False, isV): A(x)
        A.st("p1end")
    A(f"s_cmp_ge_u32 s{sCT}, 10")
    A(f"s_cbranch_scc1 {L('vpath')}")
    mainloop(False)
    sSC = 46
    vST = 2
    A(f"""
    s_cmp_ge_u32 s{sCT}, 5
    s_cselect_b32 s{sSC}, 1.0, {hex(f32bits(QSCALE))}
    s_cselect_b32 s47, {WS_K - 5*32768}, {WS_Q}
    s_cselect_b64 vcc, -1, 0
    v_and_b32 v6, 19, v20
    v_bfe_u32 v7, v20, 2, 1
    v_lshl_or_b32 v6, v7, 3, v6
    v_bfe_u32 v7, v20, 3, 1
    v_lshl_or_b32 v6, v7, 2, v6
    v_cndmask_b32 v6, v20, v6, vcc
    v_lshlrev_b32 v6, 4, v6
    v_lshl_add_u32 v6, v21, 11, v6
    s_mul_i32 s3, s{sRT}, 163840
    s_add_u32 s47, s47, s3
    s_lshl_b32 s3, s{sCT}, 15
    s_add_u32 s47, s47, s3
    s_lshl_b32 s3, s{sWC}, 14
    s_add_u32 s47, s47, s3
    s_lshl_b32 s3, s{sWR}, 10
    s_add_u32 s47, s47, s3
    v_add_u32 v{vST}, s47, v6
    s_barrier
    """)
    A.st("p1stat")
    vMN, vRS = 14, 16
    CSR = 32
    A(f"""
    s_lshl_b32 s3, s{sWR}, 8
    s_add_u32 s3, s3, {STAT}
    v_lshl_add_u32 v18, v20, 2, s3
    ds_read_b32 v{vMN}, v18
    ds_read_b32 v{vMN+1}, v18 offset:128
    ds_read_b32 v{vRS}, v18 offset:512
    ds_read_b32 v{vRS+1}, v18 offset:640
    s_lshl_b32 s3, s{sWC}, 8
    s_add_u32 s3, s3, {STAT+1024}
    v_lshl_add_u32 v19, v21, 4, s3
    """)
    for ws in range(2):
        for i in range(4):
            A(f"ds_read_b128 {v(CSR+16*ws+4*i,4)}, v19 offset:{ws*128+i*32}")
    A("s_waitcnt lgkmcnt(8)")
    A(f"v_mul_f32 v{vRS}, s{sSC}, v{vRS}")
    A(f"v_mul_f32 v{vRS+1}, s{sSC}, v{vRS+1}")
    A("s_waitcnt lgkmcnt(0)")
    for ws in range(2):
        for xs in range(2):
            b = ACC + 16*(2*xs+ws)
            sel = f"op_sel:[{xs},0,0] op_sel_hi:[{xs},1,1]"
            for r in range(0, 16, 2): A(f"v_pk_fma_f32 {v(b+r,2)}, {v(vMN,2)}, {v(CSR+16*ws+r,2)}, {v(b+r,2)} {sel} neg_lo:[1,0,0] neg_hi:[1,0,0]")
            for r in range(0, 16, 2): A(f"v_pk_mul_f32 {v(b+r,2)}, {v(vRS,2)}, {v(b+r,2)} op_sel:[{xs},0] op_sel_hi:[{xs},1]")
            for r in range(8): A(f"v_cvt_pk_bf16_f32 v{b+r}, v{b+2*r}, v{b+2*r+1}")
            A(f"s_mov_b32 s3, {ws*8192 + xs*512}")
            A(f"s_mov_b32 s14, {ws*8192 + xs*512 + 4096}")
            for ip in range(2):
                A(f"v_permlane32_swap_b32 v{b+4*ip}, v{b+4*ip+2}")
                A(f"v_permlane32_swap_b32 v{b+4*ip+1}, v{b+4*ip+3}")
            for ip in range(2):
                A(f"buffer_store_dwordx4 {v(b+4*ip,4)}, v{vST}, {R(SWS)}, s{14 if ip else 3} offen {STF}")
    A(f"s_branch {L('done')}")
    A.label(L('vpath'))
    mainloop(True)
    vVA = 2
    A(f"""
    s_mul_i32 s3, s{sRT}, 163840
    s_mul_i32 s14, s{sWR}, 81920
    s_add_u32 s3, s3, s14
    s_lshl_b32 s14, s{sCT}, 11
    s_add_u32 s3, s3, s14
    s_lshl_b32 s14, s{sWC}, 10
    s_add_u32 s3, s3, s14
    s_add_u32 s3, s3, {WS_V - 10*2048}
    v_mul_u32_u24 v5, 10240, v21
    v_lshl_add_u32 v5, v20, 4, v5
    v_add_u32 v{vVA}, s3, v5
    s_barrier
    """)
    A.st("p1stat")
    vCSL = 4
    A(f"""
    s_lshl_b32 s3, s{sWC}, 8
    s_add_u32 s3, s3, {STAT+1024}
    v_lshl_add_u32 v18, v20, 2, s3
    ds_read_b32 v{vCSL}, v18
    ds_read_b32 v{vCSL+1}, v18 offset:128
    s_lshl_b32 s3, s{sWR}, 8
    s_add_u32 s3, s3, {STAT}
    v_lshl_add_u32 v19, v21, 4, s3
    """)
    for xs in range(2):
        for i in range(4):
            A(f"ds_read_b128 {v(128+32*xs+4*i,4)}, v19 offset:{xs*128+i*32}")
            A(f"ds_read_b128 {v(144+32*xs+4*i,4)}, v19 offset:{512+xs*128+i*32}")
    for xs in range(2):
        A(f"s_waitcnt lgkmcnt({8 if xs == 0 else 0})")
        for ws in range(2):
            b = ACC + 16*(2*xs+ws)
            for r in range(0, 16, 2): A(f"v_pk_fma_f32 {v(b+r,2)}, {v(vCSL,2)}, {v(128+32*xs+r,2)}, {v(b+r,2)} op_sel:[{ws},0,0] op_sel_hi:[{ws},1,1] neg_lo:[1,0,0] neg_hi:[1,0,0]")
            for r in range(0, 16, 2): A(f"v_pk_mul_f32 {v(b+r,2)}, {v(144+32*xs+r,2)}, {v(b+r,2)}")
            for r in range(8): A(f"v_cvt_pk_bf16_f32 v{b+r}, v{b+2*r}, v{b+2*r+1}")
            for sp in range(2):
                A(f"s_mov_b32 s3, {(2*xs+sp)*20480}")
                A(f"buffer_store_dwordx4 {v(b+4*sp,4)}, v{vVA}, {R(SWS)}, s3 offen offset:{ws*512} {STF}")
    A(f"s_branch {L('done')}")
    A.label(L('spare'))
    A(f"""
    s_lshl_b32 s3, s{sRT}, 3
    s_add_u32 s3, s3, s{sW}
    s_lshl_b32 s15, s3, 4
    v_lshrrev_b32 v2, 2, v0
    v_add_u32 v3, s15, v2
    v_mul_u32_u24 v3, 1280, v3
    v_and_b32 v4, 3, v0
    v_lshl_add_u32 v3, v4, 4, v3
    s_waitcnt lgkmcnt(0)
    """)
    srd(A, SX, pX, X_BYTES); srd(A, SWS, pWS, WS_END)
    for i in range(20): A(f"buffer_load_dwordx4 {v(32+4*i,4)}, v3, {R(SX)}, 0 offen offset:{i*64}")
    A(f"""
    s_mov_b32 s46, 0x3f803f80
    v_mov_b32 v6, 0
    v_mov_b32 v7, 0
    s_lshl_b32 s15, s15, 3
    s_add_u32 s15, s15, {WS_RS}
    v_lshl_add_u32 v5, v2, 3, s15
    """)
    for i in range(20):
        A(f"s_waitcnt vmcnt({19-i})")
        for j in range(4):
            A(f"v_dot2_f32_bf16 v6, v{32+4*i+j}, s46, v6")
            A(f"v_dot2_f32_bf16 v7, v{32+4*i+j}, v{32+4*i+j}, v7")
    A("s_nop 2")
    for qp in ("[1,0,3,2]", "[2,3,0,1]"):
        A(f"v_add_f32_dpp v6, v6, v6 quad_perm:{qp} row_mask:0xf bank_mask:0xf")
        A(f"v_add_f32_dpp v7, v7, v7 quad_perm:{qp} row_mask:0xf bank_mask:0xf")
        A("s_nop 0")
    A(f"""
    v_mul_f32 v6, {hex(f32bits(1.0/640))}, v6
    v_mul_f32 v7, {hex(f32bits(1.0/640))}, v7
    v_fma_f32 v7, -v6, v6, v7
    v_max_f32 v7, 0, v7
    v_add_f32 v7, {hex(f32bits(1e-5))}, v7
    v_rsq_f32 v7, v7
    s_mov_b32 exec_lo, 0x11111111
    s_mov_b32 exec_hi, 0x11111111
    buffer_store_dwordx2 v[6:7], v5, {R(SWS)}, 0 offen {STF}
    s_mov_b64 exec, -1
    s_waitcnt vmcnt(0)
    s_barrier
    s_cmp_lg_u32 s{sW}, 0
    s_cbranch_scc1 {L('done')}
    s_lshl_b32 s3, s{sRT}, 2
    s_add_u32 s3, s3, 4
    v_mov_b32 v8, s3
    v_mov_b32 v9, 1
    s_mov_b64 exec, 1
    global_store_dword v8, v9, s[{pDBG}:{pDBG+1}] sc1
    s_mov_b64 exec, -1
    """)
    A.label(L('done'))
    A.st('p1st')
    A(f"""
    v_mov_b32 v200, 0
    s_cmp_lg_u32 s{sW}, 0
    s_cbranch_scc1 {L('s1a')}
    global_load_dword v201, v200, s[{pDBG}:{pDBG+1}] sc1
    """)
    A.label(L('s1a'))
    A("s_waitcnt vmcnt(0)")
    A("s_barrier")
    A.st("p1drain")
    A(f"""
    s_cmp_lg_u32 s{sW}, 0
    s_cbranch_scc1 {L('s1b')}
    s_mov_b32 s14, {SPIN}
    """)
    A.label(L('rdy'))
    A(f"""
    v_readfirstlane_b32 s3, v201
    s_cmp_lg_u32 s3, 0
    s_cbranch_scc1 {L('rdy2')}
    global_load_dword v201, v200, s[{pDBG}:{pDBG+1}] sc1
    s_waitcnt vmcnt(0)
    s_sub_u32 s14, s14, 1
    s_cmp_lg_u32 s14, 0
    s_cbranch_scc1 {L('rdy')}
    """)
    A.label(L('rdy2'))
    A(f"""
    s_bfe_u32 s15, s2, 0x30003
    s_lshl_b32 s15, s15, 8
    s_add_u32 s15, s15, {WS_CNT + C1*256}
    v_mov_b32 v200, s15
    v_mov_b32 v201, 1
    s_mov_b64 exec, 1
    buffer_atomic_add v201, v200, {R(SWS)}, 0 offen sc0 sc1
    s_mov_b64 exec, -1
    s_add_u32 s15, s15, {(F1 - C1)*256}
    v_lshl_add_u32 v200, v0, 11, s15
    s_waitcnt vmcnt(0)
    v_readfirstlane_b32 s3, v201
    s_cmp_lg_u32 s3, 31
    s_cbranch_scc1 {L('s1b')}
    v_mov_b32 v201, 1
    s_mov_b64 exec, 255
    buffer_store_dword v201, v200, {R(SWS)}, 0 offen sc1
    s_mov_b64 exec, -1
    """)
    A.label(L('s1b'))
```

```python
from mcommon import *
XR = 246
WO_LDS = 59392
sRT64, sCT8 = 56, 57
CS_LDS = 24576
PREP_LDS = 90112

def gen_p2(A):
    L = lambda x: f"L2_{x}"
    sHD, sQB, sQG, sKH, sMODE, sCNT, sDELTA = 40, 41, 43, 44, 45, 46, 47
    sVM = 48
    sRING, sM0, sSO, sODD = 50, 51, 52, 53
    vL16, vK, vKX, vV, vIDX = 2, 4, 5, 6, 7
    QM = 8; QA = 16; QB = 20; KM = 24; KX = 32; VB = 36
    T0 = 52
    SB = 64; OB = 96; CI = 128
    vDM = 160
    PR = 168
    vPA = 164
    SLOT = 11264
    A(f"""
    s_and_b32 s3, s2, 7
    s_lshl_b32 s3, s3, 2
    s_bfe_u32 s14, s2, 0x20003
    s_add_u32 s{sHD}, s3, s14
    s_lshr_b32 s{sQB}, s2, 5
    s_mov_b32 s{sMODE}, 0
    s_mov_b32 s{sVM}, 0x000fffff
    s_mov_b32 s{sVM+1}, 0x000fffff
    s_and_b32 s{sQG}, s{sW}, 3
    s_lshr_b32 s{sKH}, s{sW}, 2
    s_and_b32 s{sODD}, s{sHD}, 1
    s_mov_b32 s{sRT64}, s{sHD}
    s_mov_b32 s{sCT8}, s{sQB}
    v_lshlrev_b32 v{vL16}, 4, v0
    v_and_b32 v{T0}, 31, v0
    v_lshrrev_b32 v{T0+1}, 5, v0
    s_mul_i32 s{sRING}, s{sKH}, {4*SLOT}
    s_mul_i32 s{sM0}, s{sQG}, 3072
    s_add_u32 s{sM0}, s{sM0}, s{sRING}
    s_lshr_b32 s96, s{sHD}, 1
    s_mul_i32 s96, s96, 10240
    """)
    A(f"""
    s_cmp_ge_u32 s{sQG}, 2
    s_cbranch_scc1 {L('vdma')}
    s_lshl_b32 s3, s{sODD}, 12
    s_add_u32 s3, s3, s96
    s_mul_i32 s14, s{sQG}, 3072
    s_add_u32 s3, s3, s14
    s_add_u32 s3, s3, {WS_K}
    v_add_u32 v{vDM}, s3, v{vL16}
    v_add_u32 v{vDM+1}, 1024, v{vDM}
    v_add_u32 v{vDM+2}, 2048, v{vDM}
    s_mov_b32 s97, 2048
    s_branch {L('dmago')}
    """)
    A.label(L('vdma'))
    A(f"""
    s_sub_u32 s3, s{sQG}, 2
    s_mul_i32 s3, s3, 192
    s_mul_i32 s14, s{sHD}, 320
    s_add_u32 s14, s14, {WS_V}
    s_cmp_eq_u32 s{sQG}, 3
    s_mov_b32 s97, 2048
    s_cmov_b32 s97, 1024
    s_cselect_b32 s15, 64, 128
    """)
    for k in range(3):
        if k < 2: A(f"v_add_u32 v{T0+2}, {64*k}, v0")
        else: A(f"v_add_u32 v{T0+2}, s15, v0")
        A(f"""
        v_add_u32 v{T0+2}, s3, v{T0+2}
        v_mul_u32_u24 v{T0+3}, 3277, v{T0+2}
        v_lshrrev_b32 v{T0+3}, 16, v{T0+3}
        v_mul_u32_u24 v{T0+4}, 20, v{T0+3}
        v_sub_u32 v{T0+2}, v{T0+2}, v{T0+4}
        v_mul_u32_u24 v{T0+3}, 10240, v{T0+3}
        v_lshl_add_u32 v{T0+3}, v{T0+2}, 4, v{T0+3}
        v_add_u32 v{vDM+k}, s14, v{T0+3}
        """)
    A.label(L('dmago'))
    A(f"""
    s_lshl_b32 s3, s{sQB}, 1
    s_lshr_b32 s14, s{sQG}, 1
    s_add_u32 s3, s3, s14
    s_mul_i32 s3, s3, 163840
    s_add_u32 s3, s3, s96
    s_and_b32 s14, s{sQG}, 1
    s_lshl_b32 s14, s14, 10
    s_add_u32 s3, s3, s14
    s_lshl_b32 s14, s{sKH}, 9
    s_add_u32 s98, s3, s14
    s_sub_u32 s99, s3, s14
    s_add_u32 s99, s99, 512
    s_mul_i32 s3, s{sODD}, 6144
    v_lshlrev_b32 v{T0+2}, 4, v{T0}
    v_lshl_add_u32 v{T0+3}, v{T0+1}, 11, v{T0+2}
    v_add_u32 v{T0+3}, s3, v{T0+3}
    s_lshl_b32 s3, s{sODD}, 3
    s_add_u32 s3, s3, 4096
    v_add_u32 v{T0+2}, s3, v{T0+2}
    v_mov_b32 v{vIDX}, 0xdddddddd
    """)
    sPJ, sPB, sPP, sPD0, sP1, sP2, sPC = 100, 101, 54, 55, 46, 47, 52
    A(f"""
    s_mul_i32 s3, s2, 7
    s_add_u32 s3, s3, s{sW}
    s_sub_u32 s3, s3, 1
    s_cmp_eq_u32 s{sW}, 0
    s_cmov_b32 s3, 1790
    s_mov_b32 s{sPC}, 0x40000000
    s_cmp_lt_u32 s3, 960
    s_cbranch_scc1 {L('pgu')}
    s_sub_u32 s3, s3, 960
    s_mov_b32 s{sPP}, 1280
    s_mul_i32 s14, s3, 6554
    s_lshr_b32 s14, s14, 16
    s_mul_i32 s15, s14, 10
    s_sub_u32 s15, s3, s15
    s_lshl_b32 s{sPD0}, s15, 2
    s_mov_b32 s10, 13108
    s_mov_b32 s11, 5
    s_cmp_lt_u32 s14, 48
    s_cbranch_scc0 {L('pwo')}
    """)
    srd(A, SA, pWD, WD_BYTES)
    A(f"""
    s_mov_b32 s{sPJ}, 4
    s_mov_b32 s{sP1}, {8*1280}
    s_mov_b32 s{sP2}, {16*1280}
    s_mul_i32 s{sPB}, s14, {32*1280}
    s_mov_b32 s12, 245760
    s_mul_i32 s13, s14, 5120
    s_add_u32 s13, s13, {WS_WD}
    s_branch {L('pdone')}
    """)
    A.label(L('pwo'))
    srd(A, SA, pWO, WO_BYTES)
    A(f"""
    s_sub_u32 s14, s14, 48
    s_mov_b32 s12, 102400
    s_cmp_lt_u32 s14, 16
    s_cbranch_scc0 {L('pwob')}
    s_mov_b32 s{sPJ}, 8
    s_mov_b32 s{sP1}, {4*1280}
    s_mov_b32 s{sP2}, {20*1280}
    s_mul_i32 s{sPB}, s14, {40*1280}
    s_lshr_b32 s3, s14, 3
    s_and_b32 s14, s14, 7
    s_branch {L('pwoc')}
    """)
    A.label(L('pwob'))
    A(f"""
    s_sub_u32 s14, s14, 16
    s_mov_b32 s{sPJ}, 20
    s_mov_b32 s{sP1}, {40*1280}
    s_mov_b32 s{sP2}, {80*1280}
    s_mul_i32 s{sPB}, s14, {160*1280}
    s_add_u32 s{sPB}, s{sPB}, {16*1280}
    s_lshr_b32 s3, s14, 1
    s_and_b32 s14, s14, 1
    s_add_u32 s14, s14, 8
    """)
    A.label(L('pwoc'))
    A(f"""
    s_mul_i32 s13, s3, 7
    s_add_u32 s13, s13, 6
    s_mul_i32 s15, s3, 3
    s_sub_u32 s15, s15, 7
    s_cmp_ge_u32 s14, 7
    s_cselect_b32 s13, s15, s13
    s_add_u32 s13, s13, s14
    s_mul_i32 s13, s13, 5120
    s_add_u32 s13, s13, {WS_WO}
    s_cmp_lt_u32 s3, 2
    s_cbranch_scc1 {L('pdone')}
    s_mov_b32 s{SA+2}, 0
    s_mov_b32 s13, 0x40000000
    s_branch {L('pdone')}
    """)
    A.label(L('pgu'))
    A(f"""
    s_cmp_ge_u32 s3, 480
    s_cselect_b32 s{SA}, s{pWU}, s{pWG}
    s_cselect_b32 s{SA+1}, s{pWU+1}, s{pWG+1}
    s_cselect_b32 s13, 6144, 0
    s_cselect_b32 s14, 480, 0
    s_mov_b32 s{SA+2}, {WG_BYTES}
    s_mov_b32 s{SA+3}, 0x00020000
    s_sub_u32 s3, s3, s14
    s_mul_i32 s14, s3, 2731
    s_lshr_b32 s14, s14, 16
    s_mul_i32 s15, s14, 24
    s_sub_u32 s15, s3, s15
    s_lshl_b32 s{sPD0}, s15, 2
    s_mov_b32 s{sPP}, 3072
    s_mov_b32 s{sPJ}, 4
    s_mov_b32 s{sP1}, {8*3072}
    s_mov_b32 s{sP2}, {16*3072}
    s_mul_i32 s{sPB}, s14, {32*3072}
    s_mov_b32 s10, 10923
    s_mov_b32 s11, 6
    s_mov_b32 s12, 245760
    s_mul_i32 s14, s14, 12288
    s_add_u32 s13, s13, s14
    s_lshl_b32 s{sPC}, s15, 8
    s_add_u32 s{sPC}, s{sPC}, s13
    s_add_u32 s{sPC}, s{sPC}, {WS_CS}
    s_add_u32 s13, s13, {WS_WGU}
    """)
    A.label(L('pdone'))
    vPL = 165
    sD = 58
    sE0 = 62
    A(f"""
    v_mul_u32_u24 v{vPL}, s{sPJ}, v{T0+1}
    v_bfe_u32 v{T0+5}, v0, 3, 2
    v_add_u32 v{vPL}, v{vPL}, v{T0+5}
    v_mul_u32_u24 v{vPL}, s{sPP}, v{vPL}
    v_and_b32 v{T0+5}, 7, v0
    v_lshl_add_u32 v{vPL}, v{T0+5}, 4, v{vPL}
    s_lshl_b32 s3, s{sPD0}, 5
    s_add_u32 s3, s3, s{sPB}
    v_add_u32 v{vPL}, s3, v{vPL}
    s_lshl_b32 s{sPB}, s{sW}, 12
    s_add_u32 s{sPB}, s{sPB}, {PREP_LDS}
    v_lshrrev_b32 v{T0+5}, 4, v0
    v_bfe_u32 v{T0+6}, v0, 2, 2
    v_lshl_add_u32 v{T0+5}, v{T0+5}, 3, v{T0+6}
    v_lshlrev_b32 v{T0+5}, 7, v{T0+5}
    v_and_b32 v{T0+6}, 3, v0
    v_lshl_add_u32 v{T0+5}, v{T0+6}, 3, v{T0+5}
    v_add_u32 v{vPA}, s{sPB}, v{T0+5}
    s_mov_b32 s{sPJ}, s{sPC}
    s_add_u32 s{sPP}, s{sP1}, s{sP2}
    """)
    sPC = sPJ; sP3 = sPP; sPM = sPB
    for f in range(4):
        A(f"""
        s_add_u32 s3, s{sPD0}, {f}
        s_mul_i32 s14, s3, s10
        s_lshr_b32 s14, s14, 16
        s_mul_i32 s15, s14, s11
        s_sub_u32 s3, s3, s15
        s_mul_i32 s14, s14, s12
        s_lshl_b32 s3, s3, 10
        s_add_u32 s3, s3, s14
        s_add_u32 s{sD+f}, s3, s13
        """)
    srd(A, SB_, pX, X_BYTES)
    vXA, vCN, vCV, vTO, vL4, vWO = 202, 200, 201, 203, 204, 205
    sWOM, sONE = 10, 11
    A(f"""
    s_lshl_b32 s3, s{sRT64}, 2
    s_add_u32 s3, s3, s{sQG}
    s_mul_i32 s3, s3, {16*1280}
    s_mul_i32 s14, s{sCT8}, 160
    s_add_u32 s3, s3, s14
    s_lshl_b32 s14, s{sKH}, 30
    s_add_u32 s3, s3, s14
    v_and_b32 v{vXA}, 15, v0
    v_mul_u32_u24 v{vXA}, 1280, v{vXA}
    v_lshrrev_b32 v{vTO}, 4, v0
    v_lshl_add_u32 v{vXA}, v{vTO}, 3, v{vXA}
    v_add_u32 v{vXA}, s3, v{vXA}
    s_lshr_b32 s3, s2, 3
    s_lshl_b32 s3, s3, 3
    s_add_u32 s3, s3, s{sW}
    s_bfe_u32 s14, s2, 0x10002
    s_lshl_b32 s14, s14, 8
    s_add_u32 s3, s3, s14
    s_mul_i32 s3, s3, 7680
    s_add_u32 s3, s3, {WS_WGU}
    v_min_u32 v{vTO}, 14, v0
    v_lshl_add_u32 v{vTO}, v{vTO}, 7, s3
    v_lshlrev_b32 v{vL4}, 2, v0
    s_mul_i32 s3, s{sCT8}, 102400
    s_lshl_b32 s{sWOM}, s{sW}, 10
    s_add_u32 s3, s3, s{sWOM}
    s_add_u32 s3, s3, {WS_WO + 30720}
    v_add_u32 v{vWO}, s3, v{vL16}
    s_add_u32 s{sWOM}, s{sWOM}, {WO_LDS + 30720}
    s_cmp_ge_u32 s{sW}, 6
    s_cselect_b32 s12, 7, 8
    s_lshl_b32 s12, s12, 13
    s_add_u32 s13, s12, s{sWOM}
    s_lshl_b32 s3, s{sODD}, 11
    s_add_u32 s3, s3, s{sRING}
    v_lshlrev_b32 v{vK}, 4, v{T0}
    v_lshl_add_u32 v{vK}, v{T0+1}, 11, v{vK}
    v_add_u32 v{vK}, s3, v{vK}
    s_mul_i32 s3, s{sODD}, {8-4096}
    s_add_u32 s3, s3, 4096
    s_add_u32 s3, s3, s{sRING}
    v_add_u32 v{vKX}, s3, v{vL16}
    v_mul_u32_u24 v{vV}, 320, v{T0+1}
    v_lshl_add_u32 v{vV}, v{T0}, 4, v{vV}
    v_add_u32 v{vV}, s{sRING}, v{vV}
    s_mul_i32 s{sSO}, s{sKH}, {8*163840}
    s_add_u32 s97, s97, s{sM0}
    """)
    for i in range(16): A(f"v_mov_b32 v{VB+i}, 0x3f803f80")
    for i in range(32): A(f"v_mov_b32 v{OB+i}, 0")
    vXW, vXR, vOM, vOE = T0+4, T0+7, T0+6, T0+5
    A(f"""
    s_lshl_b32 s3, s{sQG}, 12
    s_add_u32 s14, s3, s{sRING}
    v_add_u32 v{vXW}, s14, v{vL16}
    s_sub_u32 s14, {4*SLOT}, s{sRING}
    s_add_u32 s14, s14, s3
    v_add_u32 v{vXR}, s14, v{vL16}
    s_lshl_b32 s3, s{sQB}, 4
    s_lshl_b32 s14, s{sQG}, 2
    s_add_u32 s3, s3, s14
    s_lshl_b32 s14, s{sKH}, 1
    s_add_u32 s3, s3, s14
    v_bfe_u32 v{vOE}, v0, 4, 1
    v_add_u32 v{vOE}, s3, v{vOE}
    v_mul_u32_u24 v{vOE}, 20480, v{vOE}
    v_and_b32 v{T0+8}, 15, v0
    s_lshl_b32 s3, s{sHD}, 9
    s_add_u32 s3, s3, {WS_O}
    v_lshl_add_u32 v{vOM}, v{T0+1}, 8, s3
    v_lshl_add_u32 v{vOM}, v{T0+8}, 4, v{vOM}
    v_add_u32 v{vOM}, v{vOM}, v{vOE}
    s_lshl_b32 s3, s{sHD}, 7
    s_add_u32 s3, s3, {WS_O + 16384}
    v_lshl_add_u32 v{vOE}, v{T0+8}, 3, v{vOE}
    v_add_u32 v{vOE}, s3, v{vOE}
    """)
    A(f"""
    s_cmp_lg_u32 s{sW}, 0
    s_cbranch_scc1 {L('s1w')}
    s_and_b32 s15, s2, 7
    s_lshl_b32 s15, s15, 3
    s_add_u32 s15, s15, {F1}
    """)
    poll(A, 15, 8, 1, 200)
    A.label(L('s1w'))
    A("s_barrier")
    A.st("s1")
    q = []
    def vm(tag, text):
        q.append(tag); return text
    def after(*tags):
        idx = max(k for k, e in enumerate(q) if e in tags)
        return len(q) - 1 - idx
    def dma_items(c):
        it = []
        for k in range(3):
            m = f"s_add_u32 m0, s{sM0 if k < 2 else 97}, {(c&3)*SLOT + (k*1024 if k < 2 else 0)}"
            ld = (f"ch{c}", f"buffer_load_dwordx4 v{vDM+k}, {R(SWS)}, s{sSO} offen {LDF} lds")
            it.append([m]); it.append([ld] + ([f"s_add_u32 s{sSO}, s{sSO}, 163840"] if k == 2 else []))
        return it
    def emit(item):
        for x in item:
            if isinstance(x, tuple): A(vm(*x))
            elif callable(x): x()
            else: A(x)
    for x in (f"buffer_load_dwordx4 {v(QM,4)}, v{T0+3}, {R(SWS)}, s98 offen {LDF}",
              f"buffer_load_dwordx4 {v(QM+4,4)}, v{T0+3}, {R(SWS)}, s99 offen {LDF}",
              f"buffer_load_dwordx2 {v(QA,2)}, v{T0+2}, {R(SWS)}, s98 offen {LDF}",
              f"buffer_load_dwordx2 {v(QA+2,2)}, v{T0+2}, {R(SWS)}, s99 offen {LDF}"):
        A(vm("q", x))
    for c in range(2):
        for k, it in enumerate(dma_items(c)):
            emit(it)
            if k % 2 == 0: A("s_nop 0")
    A(f"""
    s_bfe_u32 s3, s2, 0x30003
    s_lshl_b32 s3, s3, 8
    s_add_u32 s3, s3, {WS_CNT + CP*256}
    v_mov_b32 v206, s3
    v_mov_b32 v207, 1
    s_add_u32 s3, s3, {(FP - CP)*256}
    v_lshl_add_u32 v212, v0, 11, s3
    v_mov_b32 v213, 1
    s_and_b32 s3, s2, 7
    s_lshl_b32 s3, s3, 11
    s_add_u32 s3, s3, {WS_CNT + FP*256}
    v_and_b32 v{vCN}, 7, v0
    v_lshl_add_u32 v{vCN}, v{vCN}, 8, s3
    s_cmp_eq_u32 s{sW}, 0
    s_cselect_b32 s62, 255, 0
    s_mov_b32 s63, 0
    s_mov_b32 s{sONE}, 0x3f803f80
    v_cmp_eq_u32 vcc, 0, v{T0+1}
    v_mov_b32 v{vCV}, 1
    s_waitcnt vmcnt({after("q")})
    """)
    for qq in range(2):
        for j in range(2):
            A(f"v_cndmask_b32 v{QB+2*qq+j}, v{QA+2*qq+j}, 0, vcc")
            A(f"v_cndmask_b32 v{QA+2*qq+j}, 0, v{QA+2*qq+j}, vcc")
    def so(g):
        return ((g >> 2) & 3) * SLOT
    def rdK(g): A(f"ds_read_b128 {v(KM+4*(g&1),4)}, v{vK} offset:{so(g) + (g&3)*512}")
    def rdKX(c, p): A(f"ds_read_b64 {v(KX+2*p,2)}, v{vKX} offset:{(c&3)*SLOT + p*1024}")
    def rdV(g):
        A(f"s_mov_b64 exec, s[{sVM}:{sVM+1}]")
        for sp in range(2):
            A(f"ds_read_b128 {v(VB+8*(g&1)+4*sp,4)}, v{vV} offset:{so(g) + 6144+(2*(g&3)+sp)*640}")
        A("s_mov_b64 exec, -1")
    def qk1(t, c0="0"):
        kt, qs = (t >> 1), t & 1
        A(f"v_mfma_f32_32x32x16_bf16 {v(SB+16*qs,16)}, {v(KM+4*(kt&1),4)}, {v(QM+4*qs,4)}, {c0}")
    def qk2(t):
        kt, qs = (t >> 1) & 3, t & 1
        Q = (QB if kt & 1 else QA) + 2*qs
        A(f"v_mfma_f32_32x32x8_bf16 {v(SB+16*qs,16)}, {v(KX+2*(kt>>1),2)}, {v(Q,2)}, {v(SB+16*qs,16)}")
    def pv(t, sp):
        kt, qs = (t >> 1), t & 1
        A(f"v_smfmac_f32_32x32x32_bf16 {v(OB+16*qs,16)}, {v(VB+8*(kt&1)+4*sp,4)}, {v(SB+16*qs+8*sp,8)}, v{vIDX}")
    def ex(t, a_, b_):
        for i in range(a_, b_): A(f"v_exp_f32 v{SB+16*(t&1)+i}, v{SB+16*(t&1)+i}")
    A(f"s_waitcnt vmcnt({after('ch0')})")
    A("s_barrier")
    A.st("a0")
    rdK(0); rdKX(0, 0); rdK(1); rdKX(0, 1); rdV(0)
    A("s_waitcnt lgkmcnt(4)")
    qk1(0); qk2(0)
    A("s_waitcnt lgkmcnt(0)")
    A("s_nop 10")
    side = {}
    def put(T, items): side.setdefault(T, []).extend(items)
    put(0, dma_items(2) + dma_items(3))
    prep = []
    for k, sofs in enumerate(("0", f"s{sP1}", f"s{sP2}", f"s{sP3}")):
        prep += [[f"s_add_u32 m0, s{sPM}, {k*1024}"], [("prep", f"buffer_load_dwordx4 v{vPL}, {R(SA)}, {sofs} offen lds")]]
    put(3, prep)
    put(13, dma_items(4))
    put(15, [[("x", f"buffer_load_dwordx2 {v(XR+2*mt,2)}, v{vXA}, {R(SB_)}, 0 offen offset:{mt*32}")] for mt in range(5)])
    TP = int(os.environ.get("TP", "19"))
    put(TP, [[lambda: A(f"s_waitcnt vmcnt({after('prep')})")] + [f"ds_read_b64_tr_b16 {v(PR+2*u,2)}, v{vPA} offset:{u*512}" for u in range(2)]] +
            [[f"ds_read_b64_tr_b16 {v(PR+4*f+2*u,2)}, v{vPA} offset:{u*512 + f*32}" for u in range(2)] for f in range(1, 4)])
    put(TP+1, [[("pst", f"buffer_store_dwordx4 {v(PR+4*f,4)}, v{vL16}, {R(SWS)}, s{sD+f} offen {STF}")] for f in range(4)])
    put(TP+2, [[f"v_dot2_f32_bf16 v{PR+16+f}, v{PR+4*f+j}, s{sONE}, {'0' if j == 0 else 'v%d' % (PR+16+f)}" for f in range(4)] for j in range(4)])
    put(TP+3, [[f"v_permlane16_swap_b32 v{PR+16}, v{PR+17}", f"v_permlane16_swap_b32 v{PR+18}, v{PR+19}",
              f"v_add_f32 v{PR+16}, v{PR+16}, v{PR+17}", f"v_add_f32 v{PR+18}, v{PR+18}, v{PR+19}"],
             [f"v_permlane32_swap_b32 v{PR+16}, v{PR+18}", f"v_add_f32 v{PR+16}, v{PR+16}, v{PR+18}",
              ("pst", f"buffer_store_dword v{PR+16}, v{vL4}, {R(SWS)}, s{sPC} offen {STF}")]])
    put(29, [["s_and_b64 exec, s[62:63], 1", ("arr", f"buffer_atomic_add v207, v206, {R(SWS)}, 0 offen sc0 sc1"), "s_mov_b64 exec, -1"]] + dma_items(5) + dma_items(6))
    put(33, [[lambda: A(f"s_waitcnt vmcnt({after('arr')})"), "v_cmp_eq_u32 vcc, 31, v207", "s_cmp_lg_u64 vcc, 0", "s_cselect_b64 exec, s[62:63], 0",
             ("flg", f"buffer_store_dword v213, v212, {R(SWS)}, 0 offen sc1"), "s_mov_b64 exec, -1"]])
    put(37, dma_items(7))
    TC = int(os.environ.get("TC", "42"))
    put(TC-3, [["s_mov_b64 exec, s[62:63]", ("poll", f"buffer_load_dword v{vCV}, v{vCN}, {R(SWS)}, 0 offen sc1"), "s_mov_b64 exec, -1"]])
    WO0 = int(os.environ.get("WO0", TC+1)); WOS = int(os.environ.get("WOS", "1"))
    for k in range(9):
        if k < 8:
            it = [[f"s_add_u32 m0, s{sWOM}, {k*8192}", f"s_mov_b32 s3, {k*8192}"], [("wo", f"buffer_load_dwordx4 v{vWO}, {R(SWS)}, s3 offen {LDF} lds")]]
        else:
            it = [["s_mov_b32 m0, s13"], [("wo", f"buffer_load_dwordx4 v{vWO}, {R(SWS)}, s12 offen {LDF} lds")]]
        put(WO0 + WOS*k, it)
    TO0 = int(os.environ.get("TO0", TC+10)); TOS = int(os.environ.get("TOS", "3"))
    for k in range(0 if "notouch" in OPT else 4):
        put(TO0 + TOS*k, [[f"s_mov_b32 s3, {k*1920}", "s_mov_b32 exec_hi, 0", "s_mov_b32 exec_lo, 0x7fff", ("touch", f"buffer_load_dword v{208+k}, v{vTO}, {R(SWS)}, s3 offen {LDF}"), "s_mov_b64 exec, -1"]])
    waits = {4: ("ch1",), 12: ("ch2", "ch3"), 28: ("ch4", "pst"), 36: ("ch5", "ch6"), TC: ("ch7", "poll"), 52: ()}
    pend = []
    def slot():
        if pend: emit(pend.pop(0))
    for T in range(64):
        c, t = T >> 3, T & 7
        pend += side.get(T, [])
        if T > 0: pv(T-1, 1)
        slot()
        ex(T, 0, 4)
        if T < 63: qk1(T+1)
        slot()
        ex(T, 4, 8)
        if T < 63: qk2(T+1)
        slot()
        ex(T, 8, 12)
        pv(T, 0)
        if T in waits:
            if waits[T]: A(f"s_waitcnt vmcnt({after(*waits[T])})")
            if T == 28: assert after("pst") == 0
            if T == TC:
                assert not pend
                A(f"""
                v_cmp_le_u32 vcc, 1, v{vCV}
                s_cmp_eq_u64 vcc, -1
                s_cbranch_scc0 {L('cpwait')}
                """)
                A.label(L('cpback'))
            A("s_barrier")
            A.st(f"it{c}")
        else: slot()
        ex(T, 12, 16)
        A("s_waitcnt lgkmcnt(0)")
        g = T >> 1
        n0 = len(A.lines)
        if t & 1 == 0:
            if g + 1 < 32: rdV(g + 1)
        else:
            if g + 2 < 32: rdK(g + 2)
            if t == 5 and c < 7: rdKX(c+1, 0)
            if t == 7 and c < 7: rdKX(c+1, 1)
        if len(A.lines) == n0: A("s_nop 0")
    assert not pend
    pv(63, 1)
    A.st("aend")
    A.label(L('epi'))
    A("s_nop 11")
    for i in range(4): A(f"ds_write_b128 v{vXW}, {v(OB+16+4*i,4)} offset:{i*1024}")
    A(f"""
    s_waitcnt lgkmcnt(0)
    s_barrier
    """)
    A.st("ax2")
    for i in (3, 0, 1, 2): A(f"ds_read_b128 {v(SB+4*i,4)}, v{vXR} offset:{i*1024}")
    A("s_waitcnt lgkmcnt(3)")
    A(f"v_add_f32 v{OB+12}, v{OB+12}, v{SB+12}")
    A(f"v_rcp_f32 v{OB+14}, v{OB+12}")
    A("s_waitcnt lgkmcnt(0)")
    for i in range(0, 12, 2): A(f"v_pk_add_f32 {v(OB+i,2)}, {v(OB+i,2)}, {v(SB+i,2)}")
    for i in range(0, 12, 2): A(f"v_pk_mul_f32 {v(OB+i,2)}, {v(OB+i,2)}, {v(OB+14,2)} op_sel_hi:[1,0]")
    for i in range(6): A(f"v_cvt_pk_bf16_f32 v{SB+i}, v{OB+2*i}, v{OB+2*i+1}")
    A(f"""
    buffer_store_dwordx4 {v(SB,4)}, v{vOM}, {R(SWS)}, 0 offen {STF}
    s_mov_b32 exec_hi, 0
    buffer_store_dwordx2 {v(SB+4,2)}, v{vOE}, {R(SWS)}, 0 offen {STF}
    s_mov_b64 exec, -1
    v_mov_b32 v{T0+9}, 0
    """)
    A.st("ast")
    for i in range(12): A(f"v_fmac_f32 v{T0+9}, 0, v{OB+i}")
    FLG = 20480
    A(f"""
    v_cmp_u_f32 s[14:15], v{T0+9}, v{T0+9}
    s_mov_b32 s3, {hex(f32bits(2.0**-40))}
    v_cmp_nle_f32 vcc, s3, v{OB+12}
    s_or_b64 s[14:15], s[14:15], vcc
    s_mov_b32 s3, {hex(f32bits(2.0**40))}
    v_cmp_nge_f32 vcc, s3, v{OB+12}
    s_or_b64 s[14:15], s[14:15], vcc
    s_cselect_b32 s3, 1, 0
    v_mov_b32 v{T0+9}, s3
    s_lshl_b32 s3, s{sW}, 2
    v_mov_b32 v{T0+8}, s3
    ds_write_b32 v{T0+8}, v{T0+9} offset:{FLG}
    v_and_b32 v{T0+8}, 28, v{vL4}
    s_waitcnt vmcnt(0) lgkmcnt(0)
    s_barrier
    ds_read_b32 v{T0+9}, v{T0+8} offset:{FLG}
    s_waitcnt lgkmcnt(0)
    v_cmp_ne_u32 vcc, 0, v{T0+9}
    s_cmp_eq_u64 vcc, 0
    s_cbranch_scc1 {L('done')}
    s_cmp_lg_u32 s{sMODE}, 0
    s_cbranch_scc1 {L('done')}
    s_mov_b32 s{sMODE}, 1
    s_barrier
    """)
    MX = T0 + 10
    A(f"""
    v_mov_b32 v{MX}, 0xff800000
    v_mov_b32 v{MX+1}, 0xff800000
    s_add_u32 s15, s96, {WS_K}
    s_mov_b32 s{sCNT}, 0
    """)
    A.label(L('mloop'))
    for kt in range(4):
        A(f"buffer_load_dwordx4 {v(KM,4)}, v{T0+3}, {R(SWS)}, s15 offen offset:{kt*512} {LDF}")
        A(f"buffer_load_dwordx2 {v(KX,2)}, v{T0+2}, {R(SWS)}, s15 offen offset:{kt*512} {LDF}")
        A("s_waitcnt vmcnt(0)")
        for qs in range(2):
            A(f"v_mfma_f32_32x32x16_bf16 {v(CI+16*qs,16)}, {v(KM,4)}, {v(QM+4*qs,4)}, 0")
            A(f"v_mfma_f32_32x32x8_bf16 {v(CI+16*qs,16)}, {v(KX,2)}, {v(QA+2*qs,2)}, {v(CI+16*qs,16)}")
        A("s_nop 15")
        for qs in range(2):
            for i in range(8):
                A(f"v_max3_f32 v{MX+qs}, v{CI+16*qs+2*i}, v{CI+16*qs+2*i+1}, v{MX+qs}")
    A(f"""
    s_add_u32 s15, s15, 163840
    s_add_u32 s{sCNT}, s{sCNT}, 1
    s_cmp_lt_u32 s{sCNT}, 16
    s_cbranch_scc1 {L('mloop')}
    v_mov_b32 v{T0+9}, v{MX}
    v_mov_b32 v{T0+8}, v{MX+1}
    s_nop 1
    v_permlane32_swap_b32 v{T0+9}, v{MX}
    v_permlane32_swap_b32 v{T0+8}, v{MX+1}
    v_max_f32 v{MX}, v{MX}, v{T0+9}
    v_max_f32 v{MX+1}, v{MX+1}, v{T0+8}
    """)
    for qs in range(2):
        for i in range(16): A(f"v_sub_f32 v{CI+16*qs+i}, 0, v{MX+qs}")
    for i in range(32): A(f"v_mov_b32 v{OB+i}, 0")
    A(f"""
    s_mul_i32 s14, s{sKH}, {8*163840}
    s_add_u32 s15, s96, {WS_K}
    s_add_u32 s15, s15, s14
    s_mul_i32 s3, s{sHD}, 320
    s_add_u32 s14, s14, s3
    s_add_u32 s14, s14, {WS_V}
    v_mul_u32_u24 v{T0+8}, 10240, v{T0+1}
    v_lshl_add_u32 v{T0+8}, v{T0}, 4, v{T0+8}
    v_add_u32 v{T0+9}, 20480, v{T0+8}
    s_mov_b32 s{sCNT}, 0
    """)
    A.label(L('floop'))
    A(f"""
    buffer_load_dwordx4 {v(KM,4)}, v{T0+3}, {R(SWS)}, s15 offen {LDF}
    buffer_load_dwordx2 {v(KX,2)}, v{T0+2}, {R(SWS)}, s15 offen {LDF}
    s_mov_b64 exec, s[{sVM}:{sVM+1}]
    buffer_load_dwordx4 {v(VB,4)}, v{T0+8}, {R(SWS)}, s14 offen {LDF}
    buffer_load_dwordx4 {v(VB+4,4)}, v{T0+9}, {R(SWS)}, s14 offen {LDF}
    s_mov_b64 exec, -1
    s_waitcnt vmcnt(0)
    """)
    for qs in range(2):
        qk1(qs, v(CI+16*qs, 16)); qk2(qs)
    A("s_nop 15")
    for qs in range(2): ex(qs, 0, 16)
    A("s_nop 1")
    for qs in range(2):
        pv(qs, 0); pv(qs, 1)
    A(f"""
    s_add_u32 s14, s14, 40960
    s_add_u32 s15, s15, 512
    s_add_u32 s{sCNT}, s{sCNT}, 1
    s_and_b32 s3, s{sCNT}, 3
    s_cmp_eq_u32 s3, 0
    s_cselect_b32 s3, {163840 - 2048}, 0
    s_add_u32 s15, s15, s3
    s_cmp_lt_u32 s{sCNT}, 32
    s_cbranch_scc1 {L('floop')}
    s_branch {L('epi')}
    """)
    A.label(L('cpwait'))
    A(f"""
    s_and_b32 s15, s2, 7
    s_lshl_b32 s15, s15, 3
    s_add_u32 s15, s15, {FP}
    """)
    poll(A, 15, 8, 1, 200)
    A(f"s_branch {L('cpback')}")
    A.label(L('done'))
    A.st("adrain")
    A(f"""
    s_cmp_lg_u32 s{sW}, 0
    s_cbranch_scc1 {L('s2a')}
    s_lshl_b32 s15, s{sQB}, 1
    s_add_u32 s15, s15, s{sODD}
    s_add_u32 s15, s15, {C2}
    """)
    arrive(A, 15, 200)
    A.label(L('s2a'))
```

```python
from mcommon import *
from m2 import XR, WO_LDS, sRT64, sCT8, CS_LDS
CS = 216
sNT, sKH = 43, 44
sRT128, sCT16 = 40, 41
HRING, WRING = 0, 65536

def issueW4(A, c):
    for i in range(6):
        A(f"s_add_u32 m0, s46, {WRING + (c%4)*24576 + i*1024}")
        A(f"s_add_u32 s3, s49, {i*1024}")
        A(f"buffer_load_dwordx4 v4, {R(SWS)}, s3 offen {LDF} lds")
    A(f"""
    s_add_u32 s49, s49, 24576
    s_cmp_eq_u32 s49, 245760
    s_cmov_b32 s49, 0
    """)

def gen_p3(A):
    L = lambda x: f"L3_{x}"
    vL16 = 2
    vWA, vWB, vOX = 4, 5, 6
    OF = 32
    WF = 72
    ACC = 132
    A(f"""
    s_cmp_eq_u32 s{sW}, 0
    s_cbranch_scc1 {L('poll')}
    s_cmp_lt_u32 s{sW}, 4
    s_cbranch_scc1 {L('pcs')}
    s_lshl_b32 s15, s{sNT}, 10
    s_mul_i32 s14, s{sCT8}, 102400
    s_add_u32 s14, s14, s15
    s_add_u32 s14, s14, {WS_WO}
    """)
    for k in range(8):
        if k == 7:
            A(f"s_cmp_ge_u32 s{sNT}, 2")
            A(f"s_cbranch_scc1 {L('setup')}")
        A(f"s_add_u32 m0, s15, {WO_LDS + k*4096}")
        A("s_nop 0")
        A(f"buffer_load_dwordx4 v{vL16}, {R(SWS)}, s14 offen {LDF} lds")
        A("s_add_u32 s14, s14, 4096")
    A(f"s_branch {L('setup')}")
    A.label(L('pcs'))
    A(f"""
    s_sub_u32 s3, s{sW}, 1
    s_lshl_b32 s3, s3, 6
    v_add_u32 v10, s3, v0
    v_cmp_le_u32 vcc, 96, v10
    v_mov_b32 v11, {6144 - 384}
    v_lshlrev_b32 v10, 2, v10
    v_cndmask_b32 v11, 0, v11, vcc
    v_add_u32 v11, v11, v10
    s_bfe_u32 s15, s2, 0x10002
    s_lshl_b32 s15, s15, 3
    s_lshr_b32 s14, s2, 5
    s_add_u32 s15, s15, s14
    s_mul_i32 s15, s15, 384
    s_add_u32 s15, s15, {WS_CS}
    """)
    for k in range(20):
        A(f"buffer_load_dword v{32+k}, v11, {R(SWS)}, s15 offen {LDF}")
        if k < 19: A("s_add_u32 s15, s15, 12288")
    A("s_waitcnt vmcnt(0)")
    for k in range(1, 20): A(f"v_add_f32 v32, v32, v{32+k}")
    A(f"ds_write_b32 v10, v32 offset:{CS_LDS}")
    A(f"s_branch {L('setup')}")
    A.label(L('poll'))
    A(f"""
    s_lshr_b32 s15, s{sRT64}, 2
    s_lshl_b32 s15, s15, 1
    s_add_u32 s15, s15, {C2}
    """)
    poll(A, 15, 2, 16, 200)
    A.label(L('setup'))
    sOO, sTG = 46, 47
    A(f"""
    s_lshl_b32 s{sTG}, s{sRT64}, 2
    s_add_u32 s{sTG}, s{sTG}, s{sNT}
    s_mul_i32 s{sOO}, s{sTG}, 20480
    s_add_u32 s{sOO}, s{sOO}, {WS_O}
    s_lshl_b32 s3, s{sKH}, 13
    s_add_u32 s48, s{sOO}, s3
    s_add_u32 s49, s48, 4096
    s_lshl_b32 s3, s{sKH}, 11
    s_add_u32 s50, s{sOO}, s3
    s_add_u32 s50, s50, 16384
    v_lshrrev_b32 v7, 4, v0
    v_and_b32 v8, 15, v0
    v_lshlrev_b32 v{vOX}, 8, v7
    v_lshl_add_u32 v{vOX}, v8, 3, v{vOX}
    s_mul_i32 s3, s{sKH}, {7*5120}
    s_add_u32 s3, s3, {WO_LDS + 30720}
    v_add_u32 v{vWA}, s3, v{vL16}
    s_mul_i32 s3, s{sKH}, {3*5120}
    s_add_u32 s3, s3, {WO_LDS}
    v_add_u32 v{vWB}, s3, v{vL16}
    s_and_b32 s3, s2, 3
    s_lshl_b32 s3, s3, 2
    s_bfe_u32 s14, s2, 0x20003
    s_add_u32 s{sRT128}, s3, s14
    s_bfe_u32 s3, s2, 0x10002
    s_lshl_b32 s3, s3, 3
    s_lshr_b32 s14, s2, 5
    s_add_u32 s{sCT16}, s3, s14
    s_and_b32 s3, s{sW}, 1
    s_mul_i32 s3, s3, 192
    s_add_u32 s3, s3, {CS_LDS}
    v_lshl_add_u32 v9, v7, 4, s3
    """)
    A("""
    s_waitcnt vmcnt(0) lgkmcnt(0)
    s_barrier
    """)
    A.st("s2")
    for i in range(8):
        A(f"buffer_load_dwordx4 {v(OF+4*i,4)}, v{vL16}, {R(SWS)}, s{48 + (i>>2)} offen offset:{(i&3)*1024} {LDF}")
    for e in range(2):
        for u in range(2):
            A(f"buffer_load_dwordx2 {v(OF+32+4*e+2*u,2)}, v{vOX}, {R(SWS)}, s50 offen offset:{e*1024 + u*128} {LDF}")
    def wreads(i):
        return [f"ds_read_b128 {v(WF+20*(i%3)+4*mt,4)}, v{vWA if i < 7 else vWB} offset:{(i if i < 7 else i-7)*5120 + mt*1024}" for mt in range(5)]
    for m in range(2):
        for mt in range(3):
            A(f"ds_read_b128 {v(CS+12*m+4*mt,4)}, v9 offset:{m*384 + mt*64}")
    for x in wreads(0) + wreads(1): A(x)
    for i in range(10):
        n = (11 - i) if i < 8 else (2 if i == 8 else 0)
        A(f"s_waitcnt vmcnt({n}) lgkmcnt({5 if i < 9 else 0})")
        if i == 1: A.st("p3i1")
        r = wreads(i+2) if i < 8 else [None]*5
        for mt in range(5):
            acc = v(ACC+4*mt, 4)
            A(f"v_mfma_f32_16x16x32_bf16 {acc}, {v(WF+20*(i%3)+4*mt,4)}, {v(OF+4*i,4)}, {'0' if i==0 else acc}")
            if r[mt]: A(r[mt])
    A.st("p3end")
    A(f"""
    s_mul_i32 s3, s{sNT}, 5120
    v_add_u32 v20, s3, v{vL16}
    s_cmp_eq_u32 s{sKH}, 0
    s_cbranch_scc1 {L('fin')}
    s_nop 4
    """)
    for mt in range(5): A(f"ds_write_b128 v20, {v(ACC+4*mt,4)} offset:{mt*1024}")
    A("""
    s_waitcnt lgkmcnt(0)
    s_barrier
    """)
    A(f"""
    s_mul_i32 s46, s{sNT}, 6144
    s_mul_i32 s47, s{sCT16}, 245760
    s_add_u32 s47, s47, s46
    s_add_u32 s47, s47, {WS_WGU}
    v_add_u32 v4, s47, v{vL16}
    s_and_b32 s3, s{sCT16}, 7
    s_mul_i32 s3, s3, 10
    s_lshr_b32 s3, s3, 3
    s_and_b32 s14, s{sRT128}, 3
    s_mul_i32 s14, s14, 10
    s_lshr_b32 s14, s14, 2
    s_add_u32 s3, s3, s14
    s_cmp_ge_u32 s3, 10
    s_cselect_b32 s14, 10, 0
    s_sub_u32 s3, s3, s14
    """)
    if "norot4" in OPT: A("s_mov_b32 s3, 0")
    A(f"""
    s_lshl_b32 s48, s3, 11
    s_mul_i32 s49, s3, 24576
    """)
    NPRE = int(os.environ.get("NPRE3", "1"))
    for c in range(4):
        if c == NPRE: A("s_barrier")
        issueW4(A, c)
    if NPRE >= 4: A("s_barrier")
    A(f"s_branch {L('done')}")
    A.label(L('fin'))
    A(f"""
    s_mul_i32 s14, s{sTG}, 20480
    s_mul_i32 s3, s{sCT8}, 2560
    s_add_u32 s14, s14, s3
    s_add_u32 s14, s14, {WS_H}
    v_and_b32 v21, 1, v7
    v_lshlrev_b32 v21, 9, v21
    v_lshrrev_b32 v22, 1, v7
    v_lshl_add_u32 v21, v22, 8, v21
    v_lshl_add_u32 v21, v8, 4, v21
    s_lshl_b32 s15, s{sTG}, 10
    s_lshl_b32 s3, s{sCT8}, 7
    s_add_u32 s15, s15, s3
    s_add_u32 s15, s15, {WS_ST}
    v_lshlrev_b32 v22, 3, v8
    v_mov_b32 v28, 0
    v_mov_b32 v29, 0
    s_mov_b32 s53, 0x3f803f80
    """)
    for mt in range(5):
        A(f"""
        v_lshlrev_b32 v{OF+4*mt}, 16, v{XR+2*mt}
        v_and_b32 v{OF+4*mt+1}, 0xffff0000, v{XR+2*mt}
        v_lshlrev_b32 v{OF+4*mt+2}, 16, v{XR+2*mt+1}
        v_and_b32 v{OF+4*mt+3}, 0xffff0000, v{XR+2*mt+1}
        """)
    for r in range(20): A(f"v_add_f32 v{ACC+r}, v{ACC+r}, v{OF+r}")
    A("s_barrier")
    A.st("p3red")
    for mt in range(5): A(f"ds_read_b128 {v(WF+4*mt,4)}, v20 offset:{mt*1024}")
    for mt in range(5):
        A(f"s_waitcnt lgkmcnt({4-mt})")
        for j in range(4): A(f"v_add_f32 v{ACC+4*mt+j}, v{ACC+4*mt+j}, v{WF+4*mt+j}")
        A(f"v_cvt_pk_bf16_f32 v{XR+2*mt}, v{ACC+4*mt}, v{ACC+4*mt+1}")
        A(f"v_cvt_pk_bf16_f32 v{XR+2*mt+1}, v{ACC+4*mt+2}, v{ACC+4*mt+3}")
    for r in range(10): A(f"v_mov_b32 v{OF+r}, v{XR+r}")
    A(f"v_mov_b32 v{OF+10}, v{XR+8}")
    A(f"v_mov_b32 v{OF+11}, v{XR+9}")
    for p in range(3):
        if p == 2: A("s_nop 0")
        A(f"v_permlane16_swap_b32 v{OF+4*p}, v{OF+4*p+2}")
        A(f"v_permlane16_swap_b32 v{OF+4*p+1}, v{OF+4*p+3}")
    A(f"""
    buffer_store_dwordx4 {v(OF,4)}, v21, {R(SWS)}, s14 offen {STF}
    buffer_store_dwordx4 {v(OF+4,4)}, v21, {R(SWS)}, s14 offen offset:1024 {STF}
    s_mov_b32 exec_lo, 0xffff
    s_mov_b32 exec_hi, 0xffff
    buffer_store_dwordx4 {v(OF+8,4)}, v21, {R(SWS)}, s14 offen offset:2048 {STF}
    s_mov_b64 exec, -1
    """)
    for r in range(10):
        A(f"v_dot2_f32_bf16 v28, v{XR+r}, s53, v28")
        A(f"v_dot2_f32_bf16 v29, v{XR+r}, v{XR+r}, v29")
    A(f"""
    s_nop 2
    v_mov_b32 v30, v28
    v_mov_b32 v31, v29
    s_nop 1
    v_permlane32_swap_b32 v30, v28
    v_permlane32_swap_b32 v31, v29
    v_add_f32 v28, v28, v30
    v_add_f32 v29, v29, v31
    v_mov_b32 v30, v28
    v_mov_b32 v31, v29
    s_nop 1
    v_permlane16_swap_b32 v30, v28
    v_permlane16_swap_b32 v31, v29
    v_add_f32 v28, v28, v30
    v_add_f32 v29, v29, v31
    s_mov_b32 exec_lo, 0xffff
    s_mov_b32 exec_hi, 0
    buffer_store_dwordx2 v[28:29], v22, {R(SWS)}, s15 offen {STF}
    s_mov_b64 exec, -1
    """)
    A.st("p3st")
    A("""
    s_waitcnt vmcnt(0)
    s_barrier
    """)
    A.st("p3drain")
    A(f"""
    s_cmp_lg_u32 s{sW}, 0
    s_cbranch_scc1 {L('done')}
    s_lshr_b32 s15, s{sRT64}, 1
    s_add_u32 s15, s15, {C3}
    s_lshl_b32 s15, s15, 8
    s_add_u32 s15, s15, {WS_CNT}
    v_lshl_add_u32 v200, v0, 12, s15
    v_mov_b32 v201, 1
    s_mov_b64 exec, 3
    buffer_atomic_add v201, v200, {R(SWS)}, 0 offen sc1
    s_mov_b64 exec, -1
    s_bfe_u32 s15, s2, 0x10002
    s_lshl_b32 s15, s15, 4
    s_add_u32 s15, s15, s{sRT128}
    s_add_u32 s15, s15, {C3}
    """)
    poll(A, 15, 1, 16, 200)
    A.label(L('done'))

def gen_p4(A):
    L = lambda x: f"L4_{x}"
    vL16 = 2
    A(f"s_cmp_lt_u32 s{sW}, 4")
    A(f"s_cbranch_scc1 {L('compute')}")
    sMH = 47
    A(f"""
    s_lshl_b32 s3, s{sRT128}, 2
    s_add_u32 s3, s3, s{sNT}
    s_mul_i32 s3, s3, 40960
    s_add_u32 s3, s3, {WS_H}
    v_add_u32 v5, s3, v{vL16}
    s_lshl_b32 s{sMH}, s{sNT}, 11
    s_barrier
    """)
    def issueH(c):
        for ksl in range(2):
            for t in range(2):
                A(f"s_add_u32 m0, s{sMH}, {HRING + (c%4)*16384 + ksl*8192 + t*1024}")
                A(f"s_add_u32 s3, s48, {t*20480 + ksl*1024}")
                A(f"buffer_load_dwordx4 v5, {R(SWS)}, s3 offen {LDF} lds")
        A(f"""
        s_add_u32 s48, s48, 2048
        s_cmp_eq_u32 s48, 20480
        s_cmov_b32 s48, 0
        """)
    for c in range(4): issueH(c)
    A(f"""
    s_lshr_b32 s3, s2, 3
    s_lshl_b32 s3, s3, 2
    s_add_u32 s3, s3, s{sNT}
    s_mul_i32 s50, s3, 15360
    s_add_u32 s50, s50, {WS_WD}
    v_min_u32 v6, 59, v0
    v_lshlrev_b32 v6, 7, v6
    """)
    q = [0]*4 + [1]*4 + [2]*4 + [3]*4
    TW = int(os.environ.get("TW", "5"))
    for c in range(10):
        n = len(q) - 1 - max(k for k, e in enumerate(q) if e == c)
        A(f"s_waitcnt vmcnt({n})")
        A("s_barrier")
        if 1 <= c <= 6:
            issueH(c+3); issueW4(A, c+3); q += [c+3]*10
        if c in (TW, TW+1) and 'notouchd' not in OPT:
            A(f"buffer_load_dword v{7 + c - TW}, v6, {R(SWS)}, s50 offen {LDF}")
            A("s_add_u32 s50, s50, 7680")
            q.append(-1)
    A("s_barrier")
    A(f"""
    s_mul_i32 s46, s{sNT}, 10240
    s_lshr_b32 s3, s{sNT}, 1
    s_mul_i32 s3, s3, {24*5120}
    s_and_b32 s14, s{sNT}, 1
    s_mul_i32 s14, s14, 10240
    s_add_u32 s3, s3, s14
    s_mul_i32 s14, s{sCT8}, 245760
    s_add_u32 s3, s3, s14
    s_add_u32 s3, s3, {WS_WD}
    v_add_u32 v4, s3, v{vL16}
    s_mul_i32 s49, s{sCT8}, {0 if "norot5" in OPT else 6}
    s_lshr_b32 s49, s49, 3
    s_mul_i32 s49, s49, 20480
    """)
    for st in range(4):
        for i in range(10):
            A(f"s_add_u32 m0, s46, {st*40960 + i*1024}")
            A(f"s_add_u32 s3, s49, {i*1024}")
            A(f"buffer_load_dwordx4 v4, {R(SWS)}, s3 offen {LDF} lds")
        A(f"""
        s_add_u32 s49, s49, 20480
        s_cmp_eq_u32 s49, 122880
        s_cmov_b32 s49, 0
        """)
        if st == int(os.environ.get("NPRE4", "1")) - 1: A("s_barrier")
    A(f"s_branch {L('done')}")
    A.label(L('compute'))
    sWR, sWC = 45, 46
    vHB, vHC, vWBs, vWC_ = 4, 5, 6, 7
    HF = 16; WA = 48; WB = 60; ACC = 96; STR = 192
    A(f"""
    s_lshr_b32 s{sWR}, s{sW}, 1
    s_and_b32 s{sWC}, s{sW}, 1
    s_lshl_b32 s3, s{sWR}, 12
    v_add_u32 v{vHB}, s3, v{vL16}
    s_mul_i32 s3, s{sWC}, 3072
    s_add_u32 s3, s3, {WRING}
    v_add_u32 v{vWBs}, s3, v{vL16}
    v_lshrrev_b32 v10, 4, v0
    v_and_b32 v11, 15, v0
    s_lshl_b32 s15, s{sRT128}, 1
    s_add_u32 s15, s15, s{sWR}
    s_lshl_b32 s15, s15, 12
    s_add_u32 s15, s15, {WS_ST}
    v_lshlrev_b32 v12, 8, v10
    v_lshl_add_u32 v12, v11, 3, v12
    s_barrier
    """)
    A.st("s3")
    for nt in range(4):
        for u in range(2):
            A(f"buffer_load_dwordx2 {v(STR+4*nt+2*u,2)}, v12, {R(SWS)}, s15 offen offset:{nt*1024 + u*128} {LDF}")
    def setaddr(c):
        A(f"v_add_u32 v{vHC}, {HRING + (c%4)*16384}, v{vHB}")
        A(f"v_add_u32 v{vWC_}, {(c%4)*24576}, v{vWBs}")
    def rdH(ksl, f): return [f"ds_read_b128 {v(HF+16*f+4*nt,4)}, v{vHC} offset:{ksl*8192 + nt*1024}" for nt in range(4)]
    def rdW(ksl, m): return [f"ds_read_b128 {v((WB if m else WA)+4*mt,4)}, v{vWC_} offset:{ksl*12288 + m*6144 + mt*1024}" for mt in range(3)]
    def mf(m, f, first, r):
        b = WB if m else WA
        k = 0
        for mt in range(3):
            for nt in range(4):
                acc = v(ACC + 48*m + 16*mt + 4*nt, 4)
                A(f"v_mfma_f32_16x16x32_bf16 {acc}, {v(b+4*mt,4)}, {v(HF+16*f+4*nt,4)}, {'0' if first else acc}")
                if k < len(r): A(r[k])
                k += 1
    setaddr(0)
    A("s_barrier")
    A.st("p4b0")
    for x in rdH(0, 0) + rdW(0, 0): A(x)
    for c in range(10):
        A("s_waitcnt lgkmcnt(0)")
        mf(0, 0, c == 0, rdW(0, 1) + rdH(1, 1))
        A("s_waitcnt lgkmcnt(4)")
        mf(1, 0, c == 0, rdW(1, 0))
        A("s_waitcnt lgkmcnt(0)")
        mf(0, 1, False, rdW(1, 1))
        A("s_waitcnt lgkmcnt(0)")
        if c < 9: setaddr(c+1)
        A("s_barrier")
        mf(1, 1, False, (rdW(0, 0) + rdH(0, 0)) if c < 9 else [])
    A.st("p4end")
    A("s_waitcnt vmcnt(0)")
    MN = 16
    for nt in range(4):
        A(f"v_add_f32 v{STR+4*nt}, v{STR+4*nt}, v{STR+4*nt+2}")
        A(f"v_add_f32 v{STR+4*nt+1}, v{STR+4*nt+1}, v{STR+4*nt+3}")
    for sw in ("v_permlane32_swap_b32", "v_permlane16_swap_b32"):
        for nt in range(4):
            A(f"v_mov_b32 v{STR+4*nt+2}, v{STR+4*nt}")
            A(f"v_mov_b32 v{STR+4*nt+3}, v{STR+4*nt+1}")
        A("s_nop 0")
        for nt in range(4):
            A(f"{sw} v{STR+4*nt+2}, v{STR+4*nt}")
            A(f"{sw} v{STR+4*nt+3}, v{STR+4*nt+1}")
        for nt in range(4):
            A(f"v_add_f32 v{STR+4*nt}, v{STR+4*nt}, v{STR+4*nt+2}")
            A(f"v_add_f32 v{STR+4*nt+1}, v{STR+4*nt+1}, v{STR+4*nt+3}")
    for nt in range(4):
        b = STR + 4*nt
        A(f"""
        v_mul_f32 v{b}, {hex(f32bits(1.0/640))}, v{b}
        v_mul_f32 v{b+1}, {hex(f32bits(1.0/640))}, v{b+1}
        v_fma_f32 v{b+1}, -v{b}, v{b}, v{b+1}
        v_max_f32 v{b+1}, 0, v{b+1}
        v_add_f32 v{b+1}, {hex(f32bits(1e-5))}, v{b+1}
        v_rcp_f32 v{b+1}, v{b+1}
        """)
    A(f"""
    s_lshl_b32 s3, s{sRT128}, 3
    s_lshl_b32 s14, s{sWR}, 2
    s_add_u32 s3, s3, s14
    s_mul_i32 s3, s3, 49152
    s_mul_i32 s14, s{sCT16}, 3072
    s_add_u32 s3, s3, s14
    s_mul_i32 s14, s{sWC}, 1536
    s_add_u32 s3, s3, s14
    s_add_u32 s3, s3, {WS_G}
    s_add_u32 s14, s3, {2*49152}
    v_and_b32 v12, 1, v10
    v_mul_u32_u24 v12, 49152, v12
    v_lshrrev_b32 v13, 1, v10
    v_lshl_add_u32 v12, v13, 8, v12
    v_lshl_add_u32 v12, v11, 4, v12
    """)
    for mt in range(3):
        for p in range(2):
            for q in range(2):
                nt = 2*p + q
                g = ACC + 16*mt + 4*nt; u = g + 48
                for j in (0, 2):
                    A(f"v_pk_fma_f32 {v(g+j,2)}, {v(STR+4*nt,2)}, {v(CS+4*mt+j,2)}, {v(g+j,2)} op_sel_hi:[0,1,1] neg_lo:[1,0,0] neg_hi:[1,0,0]")
                    A(f"v_pk_fma_f32 {v(u+j,2)}, {v(STR+4*nt,2)}, {v(CS+12+4*mt+j,2)}, {v(u+j,2)} op_sel_hi:[0,1,1] neg_lo:[1,0,0] neg_hi:[1,0,0]")
                for j in range(4):
                    A(f"v_max_f32 v{g+j}, 0, v{g+j}")
                for j in (0, 2):
                    A(f"v_pk_mul_f32 {v(u+j,2)}, {v(STR+4*nt,2)}, {v(u+j,2)} op_sel:[1,0] op_sel_hi:[1,1]")
                for j in (0, 2):
                    A(f"v_pk_mul_f32 {v(u+j,2)}, {v(g+j,2)}, {v(u+j,2)}")
            g0 = ACC + 16*mt + 8*p; u0 = g0 + 48
            for k in range(4): A(f"v_cvt_pk_bf16_f32 v{g0+k}, v{u0+2*k}, v{u0+2*k+1}")
            A("s_nop 0")
            A(f"v_permlane16_swap_b32 v{g0}, v{g0+2}")
            A(f"v_permlane16_swap_b32 v{g0+1}, v{g0+3}")
            A(f"buffer_store_dwordx4 {v(g0,4)}, v12, {R(SWS)}, s{14 if p else 3} offen offset:{mt*512} {STF}")
    A.st("p4st")
    A("s_waitcnt vmcnt(0)")
    A("s_barrier")
    A.st("p4drain")
    A(f"""
    s_cmp_lg_u32 s{sW}, 0
    s_cbranch_scc1 {L('done')}
    s_add_u32 s15, s{sRT128}, {C4}
    """)
    arrive(A, 15, 200)
    A(f"""
    s_lshr_b32 s15, s{sRT64}, 1
    s_add_u32 s15, s15, {C4}
    """)
    poll(A, 15, 1, 16, 200)
    A.label(L('done'))

def gen_p5(A):
    L = lambda x: f"L5_{x}"
    vL16 = 2
    vWD, vWB, vWC = 4, 5, 6
    GF = 32; WF = 128; ACC = 188
    sGO, sM0 = 46, 47
    srd(A, SA, pOUT, X_BYTES)
    A(f"""
    s_lshl_b32 s50, s{sRT64}, 2
    s_add_u32 s50, s50, s{sNT}
    s_lshl_b32 s{sGO}, s50, 1
    s_add_u32 s{sGO}, s{sGO}, s{sKH}
    s_mul_i32 s{sGO}, s{sGO}, 24576
    s_add_u32 s{sGO}, s{sGO}, {WS_G}
    s_mul_i32 s{sM0}, s{sW}, 5120
    s_mul_i32 s3, s{sKH}, 24
    s_add_u32 s3, s3, s{sNT}
    s_mul_i32 s3, s3, 5120
    s_mul_i32 s14, s{sCT8}, 245760
    s_add_u32 s3, s3, s14
    s_add_u32 s3, s3, {WS_WD}
    v_add_u32 v{vWD}, s3, v{vL16}
    s_mul_i32 s3, s{sKH}, 20480
    v_add_u32 v{vWB}, s3, v{vL16}
    s_cmp_eq_u32 s{sKH}, 0
    s_cbranch_scc1 {L('hasH')}
    """)
    for r in range(10): A(f"v_mov_b32 v{XR+r}, 0")
    A.label(L('hasH'))
    for mt in range(5):
        A(f"""
        v_lshlrev_b32 v{ACC+4*mt}, 16, v{XR+2*mt}
        v_and_b32 v{ACC+4*mt+1}, 0xffff0000, v{XR+2*mt}
        v_lshlrev_b32 v{ACC+4*mt+2}, 16, v{XR+2*mt+1}
        v_and_b32 v{ACC+4*mt+3}, 0xffff0000, v{XR+2*mt+1}
        """)
    A(f"""
    s_mul_i32 s48, s{sCT8}, {0 if "norot5" in OPT else 6}
    s_lshr_b32 s48, s48, 3
    s_add_u32 s49, s48, 4
    s_cmp_ge_u32 s49, 6
    s_cselect_b32 s3, 6, 0
    s_sub_u32 s49, s49, s3
    s_mul_i32 s49, s49, 20480
    s_lshl_b32 s48, s48, 12
    s_add_u32 s51, s{sGO}, 24576
    s_add_u32 s48, s48, s{sGO}
    """)
    A("s_waitcnt vmcnt(30)")
    A("s_barrier")
    A.st("s4")
    q = []
    def gload(i):
        if i % 4 == 0 and i:
            A(f"""
            s_add_u32 s48, s48, 4096
            s_cmp_eq_u32 s48, s51
            s_cmov_b32 s48, s{sGO}
            """)
        A(f"buffer_load_dwordx4 {v(GF+4*i,4)}, v{vL16}, {R(SWS)}, s48 offen offset:{(i%4)*1024} {LDF}")
        q.append(('g', i))
    def wdma(st):
        for i in range(5):
            A(f"s_add_u32 m0, s{sM0}, {(st%4)*40960 + i*1024}")
            A(f"s_add_u32 s3, s49, {i*1024}")
            A(f"buffer_load_dwordx4 v{vWD}, {R(SWS)}, s3 offen {LDF} lds")
            q.append(('w', st))
        A(f"""
        s_add_u32 s49, s49, 20480
        s_cmp_eq_u32 s49, 122880
        s_cmov_b32 s49, 0
        """)
    def after(key):
        idx = max(k for k, e in enumerate(q) if e == key)
        return len(q) - 1 - idx
    G0 = 16
    for i in range(G0): gload(i)
    def wreads(i):
        st, ksl = i // 4, i % 4
        return [f"ds_read_b128 {v(WF+20*(i%3)+4*mt,4)}, v{vWC if st in (2, 3) else vWB} offset:{((st%4)&1)*40960 + ksl*5120 + mt*1024}" for mt in range(5)]
    A(f"v_add_u32 v{vWC}, 81920, v{vWB}")
    for x in wreads(0) + wreads(1): A(x)
    for i in range(24):
        st, ksl = i // 4, i % 4
        n = after(('g', i))
        pub = (ksl == 2 and st in (0, 3, 4))
        free = (ksl == 3 and st in (0, 1))
        if pub and st + 1 in (4, 5): n = min(n, after(('w', st + 1)))
        A(f"s_waitcnt vmcnt({n}) lgkmcnt({5 if i < 23 else 0})")
        if pub or free: A("s_barrier")
        if free:
            wdma(st + 4)
            for k in range(4): gload(G0 + 4*st + k)
        A.st(f"p5i{i}")
        r = wreads(i+2) if i < 22 else [None]*5
        for mt in range(5):
            acc = v(ACC+4*mt, 4)
            A(f"v_mfma_f32_16x16x32_bf16 {acc}, {v(WF+20*(i%3)+4*mt,4)}, {v(GF+4*i,4)}, {acc}")
            if r[mt]: A(r[mt])
    A.st("p5end")
    PITCH = 336; RED = 81920
    A(f"""
    v_and_b32 v20, 15, v0
    v_lshrrev_b32 v21, 4, v0
    s_lshl_b32 s3, s{sW}, 4
    v_add_u32 v20, s3, v20
    v_mul_u32_u24 v20, {PITCH}, v20
    v_lshl_add_u32 v20, v21, 4, v20
    v_add_u32 v20, {RED}, v20
    s_lshl_b32 s3, s{sW}, 6
    v_add_u32 v22, s3, v0
    """)
    for mt in range(5): A(f"ds_write_b128 v20, {v(ACC+4*mt,4)} offset:{mt*64}")
    def item(vi, vl, vg):
        A(f"""
        v_mul_u32_u24 v23, 6554, v{vi}
        v_lshrrev_b32 v23, 16, v23
        v_mul_u32_u24 v24, 10, v23
        v_sub_u32 v24, v{vi}, v24
        v_mul_u32_u24 v{vl}, {PITCH}, v23
        v_lshl_add_u32 v{vl}, v24, 5, v{vl}
        v_add_u32 v{vl}, {RED}, v{vl}
        v_mul_u32_u24 v{vg}, 1280, v23
        v_lshl_add_u32 v{vg}, v24, 4, v{vg}
        """)
    item(22, 25, 26)
    A("v_add_u32 v22, 512, v22")
    item(22, 27, 28)
    A(f"""
    s_mul_i32 s14, s{sRT64}, {64*1280}
    s_mul_i32 s3, s{sCT8}, 160
    s_add_u32 s14, s14, s3
    s_waitcnt lgkmcnt(0)
    s_barrier
    """)
    def fin(vl, vg, b):
        A(f"""
        ds_read_b128 {v(b,4)}, v{vl}
        ds_read_b128 {v(b+4,4)}, v{vl} offset:16
        ds_read_b128 {v(b+8,4)}, v{vl} offset:{64*PITCH}
        ds_read_b128 {v(b+12,4)}, v{vl} offset:{64*PITCH+16}
        s_waitcnt lgkmcnt(0)
        """)
        for j in range(8): A(f"v_add_f32 v{b+j}, v{b+j}, v{b+8+j}")
        for j in range(4): A(f"v_cvt_pk_bf16_f32 v{b+j}, v{b+2*j}, v{b+2*j+1}")
        A(f"buffer_store_dwordx4 {v(b,4)}, v{vg}, {R(SA)}, s14 offen")
    fin(25, 26, 32)
    A(f"s_cmp_ge_u32 s{sW}, 2")
    A(f"s_cbranch_scc1 {L('end')}")
    fin(27, 28, 48)
    A.label(L('end'))
```

```python
from asmlib import *
import math, struct, os
NAME = "sequential_preLN__softmax_full_mha__glu_gated_reglu__prompt"
S, D, H, DH, F = 2048, 640, 32, 20, 1536
WS_Q   = 0
WS_K   = WS_Q + 16*163840
WS_V   = WS_K + 16*163840
WS_O   = WS_V + 16*163840
WS_H   = WS_O + 128*20480
WS_ST  = WS_H + 128*20480
WS_CS  = WS_ST + 128*1024
WS_G   = WS_CS + 20*3072*4
WS_WO  = WS_G + 128*49152
WS_WGU = WS_WO + 8*102400
WS_WD  = WS_WGU + 16*245760
WS_RS  = WS_WD + 8*245760
WS_CNT = WS_RS + 2048*8
NCNT = 208
WS_END = WS_CNT + NCNT*256
C1, F1, C2, C3, C4, CP, FP = 0, 8, 72, 88, 120, 136, 144
X_BYTES = S*D*2; WQKV_BYTES = D*3*D*2; WO_BYTES = D*D*2; WG_BYTES = D*F*2; WD_BYTES = F*D*2
def f32bits(x): return struct.unpack("<I", struct.pack("<f", x))[0]
QSCALE = DH**-0.5 * math.log2(math.e)
OPT = set(os.environ.get("OPT", "").split(","))
STF = "sc1"
LDF = "sc1"
SPIN = 400000

pX, pWQKV, pWO, pWG, pWU, pWD, pOUT, pDBG, pWS = 4, 6, 8, 28, 30, 32, 34, 36, 38
SA, SB_, SWS = 16, 20, 24
sW = 42

def srd(A, sd, sp, nbytes):
    A(f"s_mov_b32 s{sd}, s{sp}")
    A(f"s_mov_b32 s{sd+1}, s{sp+1}")
    A(f"s_mov_b32 s{sd+2}, {nbytes}")
    A(f"s_mov_b32 s{sd+3}, 0x00020000")
def R(x): return f"s[{x}:{x+3}]"

_uid = [0]
def arrive(A, s_idx, vt):
    A(f"""
    s_lshl_b32 s3, s{s_idx}, 8
    s_add_u32 s3, s3, {WS_CNT}
    v_mov_b32 v{vt}, s3
    v_mov_b32 v{vt+1}, 1
    s_mov_b64 exec, 1
    buffer_atomic_add v{vt+1}, v{vt}, {R(SWS)}, 0 offen sc1
    s_mov_b64 exec, -1
    """)
def poll(A, s_idx, n, target, vt):
    _uid[0] += 1; u = _uid[0]
    A(f"""
    s_lshl_b32 s3, s{s_idx}, 8
    s_add_u32 s3, s3, {WS_CNT}
    v_lshl_add_u32 v{vt}, v0, 8, s3
    s_mov_b32 s14, {SPIN}
    s_mov_b64 exec, {(1 << n) - 1}
    """)
    A.label(f"Lpoll{u}")
    A(f"""
    buffer_load_dword v{vt+1}, v{vt}, {R(SWS)}, 0 offen sc1
    s_waitcnt vmcnt(0)
    v_cmp_le_u32 vcc, {target}, v{vt+1}
    s_sub_u32 s14, s14, 1
    s_cmp_eq_u32 s14, 0
    s_cbranch_scc1 Lpolld{u}
    s_cmp_eq_u64 vcc, exec
    s_cbranch_scc0 Lpoll{u}
    """)
    A.label(f"Lpolld{u}")
    A("s_mov_b64 exec, -1")

def prep_params(A, L, s_n, src, regs):
    g = regs
    sU = g['sU']
    A(f"""
    s_cmp_lt_u32 s{s_n}, 480
    s_cbranch_scc1 {L('gu')}
    s_sub_u32 s3, s{s_n}, 480
    s_mul_i32 s14, s3, 13108
    s_lshr_b32 s14, s14, 16
    s_mul_i32 s15, s14, 5
    s_sub_u32 s{sU}, s3, s15
    """)
    if src: A(f"s_mov_b32 s{g['sPP']}, 1280")
    else:
        A(f"s_mov_b32 s{g['sMG']}, 13108")
        A(f"s_mov_b32 s{g['sDV']}, 5")
        A(f"s_mov_b32 s{g['sPC']}, 0x40000000")
    A(f"""
    s_cmp_lt_u32 s14, 48
    s_cbranch_scc0 {L('wo')}
    """)
    def pat(J, P1, P2, base, add, pitch):
        A(f"""
        s_mov_b32 s{g['sJ']}, {J*pitch}
        s_mov_b32 s{g['sP1']}, {P1*pitch}
        s_mov_b32 s{g['sP2']}, {P2*pitch}
        s_mul_i32 s{g['sB']}, s14, {base*pitch}
        """)
        if add: A(f"s_add_u32 s{g['sB']}, s{g['sB']}, {add*pitch}")
    if src:
        srd(A, g['srd'], pWD, WD_BYTES); pat(4, 8, 16, 32, 0, 1280)
    else:
        A(f"""
        s_mov_b32 s{g['sCS_']}, 245760
        s_mul_i32 s{g['sDB']}, s14, 5120
        s_add_u32 s{g['sDB']}, s{g['sDB']}, {WS_WD}
        """)
    A(f"s_branch {L('done')}")
    A.label(L('wo'))
    if src: srd(A, g['srd'], pWO, WO_BYTES)
    A(f"""
    s_sub_u32 s14, s14, 48
    s_cmp_lt_u32 s14, 16
    s_cbranch_scc0 {L('wob')}
    """)
    if src:
        pat(8, 4, 20, 40, 0, 1280)
        A(f"s_branch {L('done')}")
    else:
        A(f"""
        s_lshr_b32 s3, s14, 3
        s_and_b32 s14, s14, 7
        s_branch {L('woc')}
        """)
    A.label(L('wob'))
    A("s_sub_u32 s14, s14, 16")
    if src:
        pat(20, 40, 80, 160, 16, 1280)
        A(f"""
        s_cmp_ge_u32 s14, 4
        s_cmov_b32 s{g['srd']+2}, 0
        s_branch {L('done')}
        """)
    else:
        A(f"""
        s_lshr_b32 s3, s14, 1
        s_and_b32 s14, s14, 1
        s_add_u32 s14, s14, 8
        """)
        A.label(L('woc'))
        d = g['sDB']
        A(f"""
        s_mov_b32 s{g['sCS_']}, 102400
        s_mul_i32 s{d}, s3, 7
        s_add_u32 s{d}, s{d}, 6
        s_mul_i32 s15, s3, 3
        s_sub_u32 s15, s15, 7
        s_cmp_ge_u32 s14, 7
        s_cselect_b32 s{d}, s15, s{d}
        s_add_u32 s{d}, s{d}, s14
        s_mul_i32 s{d}, s{d}, 5120
        s_add_u32 s{d}, s{d}, {WS_WO}
        s_cmp_ge_u32 s3, 2
        s_cmov_b32 s{d}, 0x40000000
        s_branch {L('done')}
        """)
    A.label(L('gu'))
    A(f"s_cmp_ge_u32 s{s_n}, 240")
    if src:
        r = g['srd']
        A(f"""
        s_cselect_b32 s{r}, s{pWU}, s{pWG}
        s_cselect_b32 s{r+1}, s{pWU+1}, s{pWG+1}
        s_mov_b32 s{r+2}, {WG_BYTES}
        s_mov_b32 s{r+3}, 0x00020000
        """)
    else:
        A(f"s_cselect_b32 s{g['sDB']}, 6144, 0")
    A(f"""
    s_cselect_b32 s14, 240, 0
    s_sub_u32 s3, s{s_n}, s14
    s_mul_i32 s14, s3, 5462
    s_lshr_b32 s14, s14, 16
    s_mul_i32 s15, s14, 12
    s_sub_u32 s{sU}, s3, s15
    """)
    if src:
        A(f"s_mov_b32 s{g['sPP']}, 3072")
        pat(4, 8, 16, 32, 0, 3072)
    else:
        d = g['sDB']
        A(f"""
        s_mov_b32 s{g['sMG']}, 10923
        s_mov_b32 s{g['sDV']}, 6
        s_mov_b32 s{g['sCS_']}, 245760
        s_mul_i32 s14, s14, 12288
        s_add_u32 s{d}, s{d}, s14
        s_lshl_b32 s{g['sPC']}, s{sU}, 9
        s_add_u32 s{g['sPC']}, s{g['sPC']}, s{d}
        s_add_u32 s{g['sPC']}, s{g['sPC']}, {WS_CS}
        s_add_u32 s{d}, s{d}, {WS_WGU}
        """)
    A.label(L('done'))
```

```python
import sys
from mcommon import *
from m1 import gen_entry, gen_p1
from m2 import gen_p2
from m3 import gen_p3, gen_p4, gen_p5
SETS = {'all': 'start p1b0 p1drain s1 a0 aend adrain s2 p3drain s3 p4b0 p4end p4drain s4 p5end'.split(),
 'p1': 'start p1iss p1b0 p1b1 p1b2 p1b3 p1b5 p1b7 p1b9 p1end p1stat p1st p1drain s1 a0'.split(),
 'p2': 'start p1drain s1 a0 it0 it1 it3 it4 it5 it6 aend ax2 ast adrain s2'.split(),
 'p5': 'start p4drain s4 p5i0 p5i1 p5i3 p5i5 p5i7 p5i9 p5i12 p5i15 p5i17 p5i19 p5end p5red'.split(),
 'h1': 'start p1st p1drain s1 ai aq ac a0 a1 it0'.split(),
 'p3': 'start s2 p3i1 p3end p3red p3st p3drain s3 p4end p4st p4drain s4 p5i1 p5i7 p5end'.split()}
def build(out, stamps=False, dbg=False):
    A = Asm()
    A.DBG = dbg
    A.SET = SETS[os.environ.get('FOCUS', 'all')]
    open(out + '.names', 'w').write(' '.join(A.SET))
    A.STAMPS = stamps
    name = NAME + "_kernel"
    A.tail = []
    gen_entry(A, name)
    gen_p1(A); gen_p2(A); gen_p3(A); gen_p4(A); gen_p5(A)
    A.endpgm()
    A.label("L_exit")
    A("s_endpgm")
    for f in A.tail: f()
    A.label("L_codeend")
    ref = open(f"cdna_kernels/{NAME}.s.ref").read().split("\n")
    hdr = [l for l in ref if l.startswith(";") and "@launch" not in l]
    txt = "\n".join(hdr) + "\n; @launch grid=(256,1,1) block=(512,1,1) lds=163840\n"
    txt += '.amdgcn_target "amdgcn-amd-amdhsa--gfx950"\n.text\n' + A.text()
    txt += f""".section .rodata,"a"
.p2align 6
.amdhsa_kernel {name}
  .amdhsa_next_free_vgpr 256
  .amdhsa_next_free_sgpr 102
  .amdhsa_accum_offset 256
  .amdhsa_group_segment_fixed_size 0
  .amdhsa_kernarg_size 80
  .amdhsa_user_sgpr_count 2
  .amdhsa_user_sgpr_kernarg_segment_ptr 1
  .amdhsa_system_sgpr_workgroup_id_x 1
.end_amdhsa_kernel
"""
    open(out, "w").write(txt)
    if not stamps and not os.environ.get("NOCHECK"):
        print("checker errors:", check(A.text(), name, ids=(0, 13, 61, 100, 130, 163, 181, 200, 211, 219, 228, 255, 256), waves=range(8)))
if __name__ == "__main__":
    tag = sys.argv[1] if len(sys.argv) > 1 else "mega"
    build(f"work/{tag}.s")
    build(f"work/{tag}_rt.s", "rt")
    build(f"work/{tag}_cyc.s", "cyc")
    build(f"work/{tag}_dbg.s", "rt", True)
```

```python
from mcommon import *
import re

def gen_entry(A, name):
    A.raw(f".globl {name}")
    A.raw(".p2align 8")
    A.raw(f".type {name},@function")
    A.label(name)
    A("s_cmp_ge_u32 s2, 256")
    A("s_cbranch_scc1 L_exit")
    A.st("start")
    A(f"""
    s_load_dwordx4 s[4:7], s[0:1], 0
    s_load_dwordx8 s[32:39], s[0:1], 48
    s_load_dwordx2 s[8:9], s[0:1], 16
    s_load_dwordx4 s[28:31], s[0:1], 32
    v_lshrrev_b32 v1, 6, v0
    v_and_b32 v0, 63, v0
    v_readfirstlane_b32 s{sW}, v1
    """)

def gen_p1(A):
    L = lambda x: f"L1_{x}"
    PD = int(os.environ.get("PD1", "2"))
    sRT, sCT = 40, 41
    A(f"""
    s_and_b32 s3, s2, 3
    s_lshl_b32 s3, s3, 2
    s_bfe_u32 s14, s2, 0x20003
    s_add_u32 s{sRT}, s3, s14
    s_bfe_u32 s3, s2, 0x10002
    s_lshl_b32 s3, s3, 3
    s_lshr_b32 s14, s2, 5
    s_add_u32 s{sCT}, s3, s14
    """)
    SX, SWQ = SA, SB_
    STAT = 0
    NS = int(os.environ.get('NS1', '4'))
    PREP = 131072
    A(f"s_cmp_eq_u32 s{sCT}, 15")
    A(f"s_cbranch_scc1 {L('spare')}")
    A(f"s_cmp_lt_u32 s{sW}, 4")
    A(f"s_cbranch_scc1 {L('compute')}")
    sLW = 43
    vX0, vX1, vWa = 2, 3, 4
    A(f"""
    s_sub_u32 s{sLW}, s{sW}, 4
    v_lshrrev_b32 v5, 3, v0
    s_lshl_b32 s3, s{sRT}, 2
    s_add_u32 s3, s3, s{sLW}
    s_lshl_b32 s3, s3, 5
    v_add_u32 v5, s3, v5
    v_mul_u32_u24 v5, 1280, v5
    v_and_b32 v6, 7, v0
    v_lshrrev_b32 v7, 4, v0
    v_xor_b32 v6, v6, v7
    v_lshlrev_b32 v6, 4, v6
    v_add_u32 v{vX0}, v5, v6
    v_xor_b32 v6, 64, v6
    v_add_u32 v{vX1}, v5, v6
    s_lshl_b32 s3, s{sLW}, 4
    v_add_u32 v5, s3, v7
    v_mul_u32_u24 v5, 3840, v5
    v_bfe_u32 v6, v0, 2, 2
    v_xor_b32 v6, v6, v7
    v_lshlrev_b32 v6, 6, v6
    v_and_b32 v8, 3, v0
    v_lshlrev_b32 v8, 4, v8
    v_add3_u32 v5, v5, v6, v8
    s_lshl_b32 s3, s{sCT}, 8
    v_add_u32 v{vWa}, s3, v5
    s_lshl_b32 s44, s{sLW}, 12
    """)
    sXO, sWO = 47, 48
    A(f"""
    s_and_b32 s3, s{sCT}, 7
    s_mul_i32 s3, s3, 10
    s_lshr_b32 s3, s3, 3
    s_and_b32 s14, s{sRT}, 3
    s_mul_i32 s14, s14, 10
    s_lshr_b32 s14, s14, 2
    s_add_u32 s3, s3, s14
    s_cmp_ge_u32 s3, 10
    s_cselect_b32 s14, 10, 0
    s_sub_u32 s3, s3, s14
    """)
    if "norot1" in OPT: A("s_mov_b32 s3, 0")
    A(f"""
    s_lshl_b32 s{sXO}, s3, 7
    s_mul_i32 s{sWO}, s3, {64*3840}
    """)
    A("s_waitcnt lgkmcnt(0)")
    srd(A, SX, pX, X_BYTES); srd(A, SWQ, pWQKV, WQKV_BYTES); srd(A, SWS, pWS, WS_END)
    q = []
    def issX(c):
        st = (c % NS) * 32768
        for i in range(4):
            A(f"s_add_u32 m0, s44, {st + i*1024}")
            A(f"s_add_u32 s45, s{sXO}, {8*i*1280}")
            A(f"buffer_load_dwordx4 v{vX1 if i&1 else vX0}, {R(SX)}, s45 offen lds")
        A(f"""
        s_add_u32 s{sXO}, s{sXO}, 128
        s_cmp_eq_u32 s{sXO}, 1280
        s_cmov_b32 s{sXO}, 0
        """)
        q.extend([c]*4)
    def issW(c):
        st = (c % NS) * 32768
        for i in range(4):
            A(f"s_add_u32 m0, s44, {st + 16384 + i*1024}")
            A(f"s_add_u32 s45, s{sWO}, {4*i*3840}")
            A(f"buffer_load_dwordx4 v{vWa}, {R(SWQ)}, s45 offen lds")
        A(f"""
        s_add_u32 s{sWO}, s{sWO}, {64*3840}
        s_cmp_eq_u32 s{sWO}, {640*3840}
        s_cmov_b32 s{sWO}, 0
        """)
        q.extend([c]*4)
    plan = os.environ.get("PLAN1", "X0W0X1W1").split("|")
    done = set()
    def run(ops):
        for m in re.findall(r"[XW]\d", ops):
            (issX if m[0] == "X" else issW)(int(m[1])); done.add(m)
    def iss(c):
        run("".join(m for m in (f"X{c}", f"W{c}") if m not in done))
    def after(*tags):
        return len(q) - 1 - max(k for k, e in enumerate(q) if e in tags)
    run(plan[0])
    A.st("p1iss")
    vAW = 22
    A(f"""
    v_lshrrev_b32 v6, 5, v0
    v_bfe_u32 v5, v0, 2, 2
    v_lshl_add_u32 v7, v6, 3, v5
    v_lshlrev_b32 v7, 8, v7
    v_xor_b32 v5, s{sLW}, v5
    v_lshlrev_b32 v5, 6, v5
    v_bfe_u32 v8, v0, 4, 1
    v_lshlrev_b32 v8, 5, v8
    v_add3_u32 v7, v7, v5, v8
    v_and_b32 v8, 3, v0
    v_lshlrev_b32 v8, 3, v8
    s_mov_b32 s3, 16384
    v_add3_u32 v{vAW}, v7, v8, s3
    v_add_u32 v{vAW+1}, 65536, v{vAW}
    s_mov_b32 s46, 0x3f803f80
    v_mov_b32 v28, 0
    """)
    vPA, vL16, vFL, vRA, vST_ = 10, 11, 12, 13, 9
    A(f"""
    s_lshl_b32 s3, s{sRT}, 2
    s_add_u32 s3, s3, 4
    v_mov_b32 v{vFL}, s3
    v_and_b32 v5, 31, v0
    s_lshl_b32 s3, s{sRT}, 2
    s_add_u32 s3, s3, s{sLW}
    s_lshl_b32 s3, s3, 8
    s_add_u32 s3, s3, {WS_RS}
    v_lshl_add_u32 v{vRA}, v5, 3, s3
    s_lshl_b32 s3, s{sLW}, 7
    s_add_u32 s3, s3, {STAT}
    v_lshl_add_u32 v{vST_}, v5, 2, s3
    """)
    vCs = 28
    vD = 32
    CF = int(os.environ.get("CF", "6")); CK = int(os.environ.get("CK", "8"))
    for c in range(10):
        A(f"s_waitcnt vmcnt({after(c)})")
        A("s_barrier")
        A.st(f"p1b{c}")
        if c + 1 < len(plan): run(plan[c+1])
        else:
            for cc in range(min(9, c + PD) + 1): iss(cc)
        if c == CF:
            A(f"global_load_dword v14, v{vFL}, s[{pDBG}:{pDBG+1}] sc1"); q.append('fl')
        st = c % NS
        o = (st & 1) * 32768; k = st >> 1
        for s_ in range(4):
            for u in range(2):
                A(f"ds_read_b64_tr_b16 {v(vD+4*s_+2*u,2)}, v{vAW+k} offset:{o + s_*4096 + u*1024}")
        for hh in range(2):
            A(f"s_waitcnt lgkmcnt({4 - 4*hh})")
            for j in range(8*hh, 8*hh + 8):
                A(f"v_dot2_f32_bf16 v{vCs}, v{vD+j}, s46, v{vCs}")
        if c == CK:
            A(f"""
            s_waitcnt vmcnt({after('fl')})
            s_mov_b32 s14, {SPIN}
            """)
            A.label(L('fl'))
            A(f"""
            v_readfirstlane_b32 s3, v14
            s_cmp_lg_u32 s3, 0
            s_cbranch_scc1 {L('fl2')}
            global_load_dword v14, v{vFL}, s[{pDBG}:{pDBG+1}] sc1
            s_waitcnt vmcnt(0)
            s_sub_u32 s14, s14, 1
            s_cmp_lg_u32 s14, 0
            s_cbranch_scc1 {L('fl')}
            """)
            A.label(L('fl2'))
            A(f"buffer_load_dwordx2 v[16:17], v{vRA}, {R(SWS)}, 0 offen {LDF}"); q.append('rs')
    A(f"""
    s_nop 2
    v_mov_b32 v31, v{vCs}
    s_nop 1
    v_permlane32_swap_b32 v31, v{vCs}
    v_add_f32 v{vCs}, v31, v{vCs}
    ds_write_b32 v{vST_}, v{vCs} offset:1024
    s_waitcnt vmcnt({after('rs')})
    ds_write_b32 v{vST_}, v16
    ds_write_b32 v{vST_}, v17 offset:512
    s_waitcnt lgkmcnt(0)
    s_barrier
    """)
    A(f"s_branch {L('done')}")
    A.label(L('compute'))
    sWR, sWC = 43, 44
    vAX = 2; vAW = 14; FR = 32; ACC = 64
    A(f"""
    s_lshr_b32 s{sWR}, s{sW}, 1
    s_and_b32 s{sWC}, s{sW}, 1
    v_and_b32 v20, 31, v0
    v_lshrrev_b32 v21, 5, v0
    v_bfe_u32 v22, v0, 1, 3
    v_xor_b32 v22, v22, v21
    v_lshlrev_b32 v22, 4, v22
    v_lshlrev_b32 v23, 7, v20
    s_lshl_b32 s3, s{sWR}, 13
    v_add3_u32 v{vAX}, v23, v22, s3
    """)
    if "nocodepf" not in OPT:
        A(f"""
        s_getpc_b64 s[46:47]
        """)
        A.label("L_pcbase")
        A(f"""
        s_lshl_b32 s3, s{sW}, 13
        v_lshl_add_u32 v128, v0, 7, s3
        """)
        for i in range(2):
            A(f"""
            v_min_u32 v129, L_codeend-L_pcbase-4, v128
            global_load_dword v{254+i}, v129, s[46:47]
            v_add_u32 v128, 32768, v128
            """)
    for s_ in range(1, 4): A(f"v_xor_b32 v{vAX+s_}, {s_*32}, v{vAX}")
    for s_ in range(4): A(f"v_add_u32 v{vAX+4+s_}, 65536, v{vAX+s_}")
    A(f"""
    v_bfe_u32 v22, v0, 2, 2
    v_lshl_add_u32 v23, v21, 3, v22
    v_lshlrev_b32 v23, 8, v23
    s_lshl_b32 s3, s{sWC}, 1
    v_xor_b32 v22, s3, v22
    v_lshlrev_b32 v22, 6, v22
    v_bfe_u32 v24, v0, 4, 1
    v_lshlrev_b32 v24, 5, v24
    v_add3_u32 v23, v23, v22, v24
    v_and_b32 v24, 3, v0
    v_lshlrev_b32 v24, 3, v24
    s_mov_b32 s3, 16384
    v_add3_u32 v{vAW}, v23, v24, s3
    v_xor_b32 v{vAW+1}, 64, v{vAW}
    """)
    for t in range(2): A(f"v_add_u32 v{vAW+2+t}, 65536, v{vAW+t}")
    if "touch1" in OPT:
        A(f"""
        s_mul_i32 s3, s{sRT}, 15
        s_add_u32 s3, s3, s{sCT}
        s_lshl_b32 s3, s3, 1
        s_add_u32 s3, s3, s{sWC}
        s_cmp_eq_u32 s{sWR}, 0
        s_cselect_b32 s14, 43, 40
        s_mul_i32 s3, s3, s14
        s_sub_u32 s14, s14, 1
        v_min_u32 v130, s14, v0
        v_add_u32 v130, s3, v130
        v_lshlrev_b32 v130, 7, v130
        s_cmp_eq_u32 s{sWR}, 0
        s_waitcnt lgkmcnt(0)
        s_cselect_b32 s{SA}, s{pX}, s{pWQKV}
        s_cselect_b32 s{SA+1}, s{pX+1}, s{pWQKV+1}
        s_mov_b32 s{SA+2}, {WQKV_BYTES}
        s_cmov_b32 s{SA+2}, {X_BYTES}
        s_mov_b32 s{SA+3}, 0x00020000
        """)
        for k in range(int(os.environ.get("TDELAY", "0"))): A("s_nop 15")
        A(f"buffer_load_dword v253, v130, {R(SA)}, 0 offen")
    A("s_waitcnt lgkmcnt(0)")
    srd(A, SWS, pWS, WS_END)
    A(f"""
    s_lshl_b32 s3, s2, 3
    s_add_u32 s3, s3, s{sW}
    s_cmp_lg_u32 s3, 1
    s_cbranch_scc1 {L('nozero')}
    s_mov_b32 s3, {WS_CNT}
    v_lshl_add_u32 v131, v0, 8, s3
    v_mov_b32 v132, 0
    s_mov_b32 s3, 16384
    buffer_store_dword v132, v131, {R(SWS)}, 0 offen sc1
    buffer_store_dword v132, v131, {R(SWS)}, s3 offen sc1
    s_mov_b32 s3, 32768
    buffer_store_dword v132, v131, {R(SWS)}, s3 offen sc1
    s_mov_b32 s3, 49152
    buffer_store_dword v132, v131, {R(SWS)}, s3 offen sc1
    s_waitcnt vmcnt(0)
    v_mov_b32 v133, 1
    s_mov_b64 exec, 1
    global_store_dword v132, v133, s[{pDBG}:{pDBG+1}] sc1
    s_mov_b64 exec, -1
    """)
    A.label(L('nozero'))
    def reads(c, s_, f, part=None):
        st = c % NS; o = (st & 1) * 32768; k = st >> 1
        b = FR + 16*f
        l = [f"ds_read_b128 {v(b,4)}, v{vAX+4*k+s_} offset:{o}",
             f"ds_read_b64_tr_b16 {v(b+8,2)}, v{vAW+2*k} offset:{o + s_*4096}",
             f"ds_read_b64_tr_b16 {v(b+10,2)}, v{vAW+2*k} offset:{o + s_*4096 + 1024}",
             f"ds_read_b128 {v(b+4,4)}, v{vAX+4*k+s_} offset:{o + 4096}",
             f"ds_read_b64_tr_b16 {v(b+12,2)}, v{vAW+2*k+1} offset:{o + s_*4096}",
             f"ds_read_b64_tr_b16 {v(b+14,2)}, v{vAW+2*k+1} offset:{o + s_*4096 + 1024}"]
        return l
    def mfmas(f, first, isV):
        b = FR + 16*f
        l = []
        for (xs, ws) in ((0,0),(1,0),(0,1),(1,1)):
            acc = v(ACC + 16*(2*xs+ws), 16)
            X = v(b+4*xs, 4); W = v(b+8+4*ws, 4)
            cc = "0" if first else acc
            l.append(f"v_mfma_f32_32x32x16_bf16 {acc}, {X}, {W}, {cc}" if isV else f"v_mfma_f32_32x32x16_bf16 {acc}, {W}, {X}, {cc}")
        return l
    def weave(m, r, allin, pi=None):
        A(m[0])
        for x in r[0:3]: A(x)
        if not allin: A("s_waitcnt lgkmcnt(3)")
        A(m[1])
        for x in r[3:6]: A(x)
        if pi is not None: A(f"s_add_u32 m0, s50, {pi*1024}")
        A(m[2])
        if pi is not None: A(f"buffer_load_dwordx4 v{vPL}, {R(SA)}, {PSO[pi]} offen lds")
        A(m[3])
    def mainloop(isV):
        A("s_barrier")
        A.st("p1b0")
        for x in reads(0, 0, 0): A(x)
        for c in range(10):
            for s_ in range(3):
                A("s_waitcnt lgkmcnt(3)")
                pi = None
                weave(mfmas(s_ & 1, c == 0 and s_ == 0, isV), reads(c, s_+1, (s_+1) & 1), False, pi)
            A("s_waitcnt lgkmcnt(0)")
            if c < 9:
                A("s_barrier")
                A.st(f"p1b{c+1}")
                weave(mfmas(1, False, isV), reads(c+1, 0, 0), True)
            else:
                for x in mfmas(1, False, isV): A(x)
        A.st("p1end")
    A(f"s_cmp_ge_u32 s{sCT}, 10")
    A(f"s_cbranch_scc1 {L('vpath')}")
    mainloop(False)
    sSC = 46
    vST = 2
    A(f"""
    s_cmp_ge_u32 s{sCT}, 5
    s_cselect_b32 s{sSC}, 1.0, {hex(f32bits(QSCALE))}
    s_cselect_b32 s47, {WS_K - 5*32768}, {WS_Q}
    s_cselect_b64 vcc, -1, 0
    v_and_b32 v6, 19, v20
    v_bfe_u32 v7, v20, 2, 1
    v_lshl_or_b32 v6, v7, 3, v6
    v_bfe_u32 v7, v20, 3, 1
    v_lshl_or_b32 v6, v7, 2, v6
    v_cndmask_b32 v6, v20, v6, vcc
    v_lshlrev_b32 v6, 4, v6
    v_lshl_add_u32 v6, v21, 11, v6
    s_mul_i32 s3, s{sRT}, 163840
    s_add_u32 s47, s47, s3
    s_lshl_b32 s3, s{sCT}, 15
    s_add_u32 s47, s47, s3
    s_lshl_b32 s3, s{sWC}, 14
    s_add_u32 s47, s47, s3
    s_lshl_b32 s3, s{sWR}, 10
    s_add_u32 s47, s47, s3
    v_add_u32 v{vST}, s47, v6
    s_barrier
    """)
    A.st("p1stat")
    vMN, vRS = 14, 16
    CSR = 32
    A(f"""
    s_lshl_b32 s3, s{sWR}, 8
    s_add_u32 s3, s3, {STAT}
    v_lshl_add_u32 v18, v20, 2, s3
    ds_read_b32 v{vMN}, v18
    ds_read_b32 v{vMN+1}, v18 offset:128
    ds_read_b32 v{vRS}, v18 offset:512
    ds_read_b32 v{vRS+1}, v18 offset:640
    s_lshl_b32 s3, s{sWC}, 8
    s_add_u32 s3, s3, {STAT+1024}
    v_lshl_add_u32 v19, v21, 4, s3
    """)
    for ws in range(2):
        for i in range(4):
            A(f"ds_read_b128 {v(CSR+16*ws+4*i,4)}, v19 offset:{ws*128+i*32}")
    A("s_waitcnt lgkmcnt(8)")
    A(f"v_mul_f32 v{vRS}, s{sSC}, v{vRS}")
    A(f"v_mul_f32 v{vRS+1}, s{sSC}, v{vRS+1}")
    A("s_waitcnt lgkmcnt(0)")
    for ws in range(2):
        for xs in range(2):
            b = ACC + 16*(2*xs+ws)
            sel = f"op_sel:[{xs},0,0] op_sel_hi:[{xs},1,1]"
            for r in range(0, 16, 2): A(f"v_pk_fma_f32 {v(b+r,2)}, {v(vMN,2)}, {v(CSR+16*ws+r,2)}, {v(b+r,2)} {sel} neg_lo:[1,0,0] neg_hi:[1,0,0]")
            for r in range(0, 16, 2): A(f"v_pk_mul_f32 {v(b+r,2)}, {v(vRS,2)}, {v(b+r,2)} op_sel:[{xs},0] op_sel_hi:[{xs},1]")
            for r in range(8): A(f"v_cvt_pk_bf16_f32 v{b+r}, v{b+2*r}, v{b+2*r+1}")
            A(f"s_mov_b32 s3, {ws*8192 + xs*512}")
            A(f"s_mov_b32 s14, {ws*8192 + xs*512 + 4096}")
            for ip in range(2):
                A(f"v_permlane32_swap_b32 v{b+4*ip}, v{b+4*ip+2}")
                A(f"v_permlane32_swap_b32 v{b+4*ip+1}, v{b+4*ip+3}")
            for ip in range(2):
                A(f"buffer_store_dwordx4 {v(b+4*ip,4)}, v{vST}, {R(SWS)}, s{14 if ip else 3} offen {STF}")
    A(f"s_branch {L('done')}")
    A.label(L('vpath'))
    mainloop(True)
    vVA = 2
    A(f"""
    s_mul_i32 s3, s{sRT}, 163840
    s_mul_i32 s14, s{sWR}, 81920
    s_add_u32 s3, s3, s14
    s_lshl_b32 s14, s{sCT}, 11
    s_add_u32 s3, s3, s14
    s_lshl_b32 s14, s{sWC}, 10
    s_add_u32 s3, s3, s14
    s_add_u32 s3, s3, {WS_V - 10*2048}
    v_mul_u32_u24 v5, 10240, v21
    v_lshl_add_u32 v5, v20, 4, v5
    v_add_u32 v{vVA}, s3, v5
    s_barrier
    """)
    A.st("p1stat")
    vCSL = 4
    A(f"""
    s_lshl_b32 s3, s{sWC}, 8
    s_add_u32 s3, s3, {STAT+1024}
    v_lshl_add_u32 v18, v20, 2, s3
    ds_read_b32 v{vCSL}, v18
    ds_read_b32 v{vCSL+1}, v18 offset:128
    s_lshl_b32 s3, s{sWR}, 8
    s_add_u32 s3, s3, {STAT}
    v_lshl_add_u32 v19, v21, 4, s3
    """)
    for xs in range(2):
        for i in range(4):
            A(f"ds_read_b128 {v(128+32*xs+4*i,4)}, v19 offset:{xs*128+i*32}")
            A(f"ds_read_b128 {v(144+32*xs+4*i,4)}, v19 offset:{512+xs*128+i*32}")
    for xs in range(2):
        A(f"s_waitcnt lgkmcnt({8 if xs == 0 else 0})")
        for ws in range(2):
            b = ACC + 16*(2*xs+ws)
            for r in range(0, 16, 2): A(f"v_pk_fma_f32 {v(b+r,2)}, {v(vCSL,2)}, {v(128+32*xs+r,2)}, {v(b+r,2)} op_sel:[{ws},0,0] op_sel_hi:[{ws},1,1] neg_lo:[1,0,0] neg_hi:[1,0,0]")
            for r in range(0, 16, 2): A(f"v_pk_mul_f32 {v(b+r,2)}, {v(144+32*xs+r,2)}, {v(b+r,2)}")
            for r in range(8): A(f"v_cvt_pk_bf16_f32 v{b+r}, v{b+2*r}, v{b+2*r+1}")
            for sp in range(2):
                A(f"s_mov_b32 s3, {(2*xs+sp)*20480}")
                A(f"buffer_store_dwordx4 {v(b+4*sp,4)}, v{vVA}, {R(SWS)}, s3 offen offset:{ws*512} {STF}")
    A(f"s_branch {L('done')}")
    A.label(L('spare'))
    A(f"""
    s_lshl_b32 s3, s{sRT}, 3
    s_add_u32 s3, s3, s{sW}
    s_lshl_b32 s15, s3, 4
    v_lshrrev_b32 v2, 2, v0
    v_add_u32 v3, s15, v2
    v_mul_u32_u24 v3, 1280, v3
    v_and_b32 v4, 3, v0
    v_lshl_add_u32 v3, v4, 4, v3
    s_waitcnt lgkmcnt(0)
    """)
    srd(A, SX, pX, X_BYTES); srd(A, SWS, pWS, WS_END)
    for i in range(20): A(f"buffer_load_dwordx4 {v(32+4*i,4)}, v3, {R(SX)}, 0 offen offset:{i*64}")
    A(f"""
    s_mov_b32 s46, 0x3f803f80
    v_mov_b32 v6, 0
    v_mov_b32 v7, 0
    s_lshl_b32 s15, s15, 3
    s_add_u32 s15, s15, {WS_RS}
    v_lshl_add_u32 v5, v2, 3, s15
    """)
    for i in range(20):
        A(f"s_waitcnt vmcnt({19-i})")
        for j in range(4):
            A(f"v_dot2_f32_bf16 v6, v{32+4*i+j}, s46, v6")
            A(f"v_dot2_f32_bf16 v7, v{32+4*i+j}, v{32+4*i+j}, v7")
    A("s_nop 2")
    for qp in ("[1,0,3,2]", "[2,3,0,1]"):
        A(f"v_add_f32_dpp v6, v6, v6 quad_perm:{qp} row_mask:0xf bank_mask:0xf")
        A(f"v_add_f32_dpp v7, v7, v7 quad_perm:{qp} row_mask:0xf bank_mask:0xf")
        A("s_nop 0")
    A(f"""
    v_mul_f32 v6, {hex(f32bits(1.0/640))}, v6
    v_mul_f32 v7, {hex(f32bits(1.0/640))}, v7
    v_fma_f32 v7, -v6, v6, v7
    v_max_f32 v7, 0, v7
    v_add_f32 v7, {hex(f32bits(1e-5))}, v7
    v_rsq_f32 v7, v7
    s_mov_b32 exec_lo, 0x11111111
    s_mov_b32 exec_hi, 0x11111111
    buffer_store_dwordx2 v[6:7], v5, {R(SWS)}, 0 offen {STF}
    s_mov_b64 exec, -1
    s_waitcnt vmcnt(0)
    s_barrier
    s_cmp_lg_u32 s{sW}, 0
    s_cbranch_scc1 {L('done')}
    s_lshl_b32 s3, s{sRT}, 2
    s_add_u32 s3, s3, 4
    v_mov_b32 v8, s3
    v_mov_b32 v9, 1
    s_mov_b64 exec, 1
    global_store_dword v8, v9, s[{pDBG}:{pDBG+1}] sc1
    s_mov_b64 exec, -1
    """)
    A.label(L('done'))
    A.st('p1st')
    A(f"""
    v_mov_b32 v200, 0
    s_cmp_lg_u32 s{sW}, 0
    s_cbranch_scc1 {L('s1a')}
    s_lshl_b32 s3, s2, 7
    s_add_u32 s3, s3, {WS_FL}
    v_lshl_add_u32 v202, v0, 15, s3
    s_mov_b64 exec, 7
    buffer_store_dword v200, v202, {R(SWS)}, 0 offen sc1
    s_mov_b64 exec, -1
    global_load_dword v201, v200, s[{pDBG}:{pDBG+1}] sc1
    """)
    A.label(L('s1a'))
    A("s_waitcnt vmcnt(0)")
    A("s_barrier")
    A.st("p1drain")
    A(f"""
    s_cmp_lg_u32 s{sW}, 0
    s_cbranch_scc1 {L('s1b')}
    s_mov_b32 s14, {SPIN}
    """)
    A.label(L('rdy'))
    A(f"""
    v_readfirstlane_b32 s3, v201
    s_cmp_lg_u32 s3, 0
    s_cbranch_scc1 {L('rdy2')}
    global_load_dword v201, v200, s[{pDBG}:{pDBG+1}] sc1
    s_waitcnt vmcnt(0)
    s_sub_u32 s14, s14, 1
    s_cmp_lg_u32 s14, 0
    s_cbranch_scc1 {L('rdy')}
    """)
    A.label(L('rdy2'))
    A(f"""
    s_bfe_u32 s15, s2, 0x30003
    s_lshl_b32 s15, s15, 8
    s_add_u32 s15, s15, {WS_CNT + C1*256}
    v_mov_b32 v200, s15
    v_mov_b32 v201, 1
    s_mov_b64 exec, 1
    buffer_atomic_add v201, v200, {R(SWS)}, 0 offen sc0 sc1
    s_mov_b64 exec, -1
    s_add_u32 s15, s15, {(F1 - C1)*256}
    v_lshl_add_u32 v200, v0, 11, s15
    s_waitcnt vmcnt(0)
    v_readfirstlane_b32 s3, v201
    s_cmp_lg_u32 s3, 31
    s_cbranch_scc1 {L('s1b')}
    v_mov_b32 v201, 1
    s_mov_b64 exec, 255
    buffer_store_dword v201, v200, {R(SWS)}, 0 offen sc1
    s_mov_b64 exec, -1
    """)
    A.label(L('s1b'))
```

```python
from mcommon import *
XR = 246
WO_LDS = 59392
sRT64, sCT8 = 56, 57
CS_LDS = 40960 + 8192
PREP_LDS = 90112

def gen_p2(A):
    L = lambda x: f"L2_{x}"
    sHD, sQB, sQG, sKH, sMODE, sCNT, sDELTA = 40, 41, 43, 44, 45, 46, 47
    sVM = 48
    sRING, sM0, sSO, sODD = 50, 51, 52, 53
    vL16, vK, vKX, vV, vIDX = 2, 4, 5, 6, 7
    QM = 8; QA = 16; QB = 20; KM = 24; KX = 32; VB = 36
    T0 = 52
    SB = 64; OB = 96; CI = 128
    vDM = 160
    PR = 168
    vPA = 164
    SLOT = 11264
    A(f"""
    s_and_b32 s3, s2, 7
    s_lshl_b32 s3, s3, 2
    s_bfe_u32 s14, s2, 0x20003
    s_add_u32 s{sHD}, s3, s14
    s_lshr_b32 s{sQB}, s2, 5
    s_mov_b32 s{sMODE}, 0
    s_mov_b32 s{sVM}, 0x000fffff
    s_mov_b32 s{sVM+1}, 0x000fffff
    s_and_b32 s{sQG}, s{sW}, 3
    s_lshr_b32 s{sKH}, s{sW}, 2
    s_and_b32 s{sODD}, s{sHD}, 1
    s_mov_b32 s{sRT64}, s{sHD}
    s_mov_b32 s{sCT8}, s{sQB}
    v_lshlrev_b32 v{vL16}, 4, v0
    v_and_b32 v{T0}, 31, v0
    v_lshrrev_b32 v{T0+1}, 5, v0
    s_mul_i32 s{sRING}, s{sKH}, {4*SLOT}
    s_mul_i32 s{sM0}, s{sQG}, 3072
    s_add_u32 s{sM0}, s{sM0}, s{sRING}
    s_lshr_b32 s96, s{sHD}, 1
    s_mul_i32 s96, s96, 10240
    """)
    A(f"""
    s_cmp_ge_u32 s{sQG}, 2
    s_cbranch_scc1 {L('vdma')}
    s_lshl_b32 s3, s{sODD}, 12
    s_add_u32 s3, s3, s96
    s_mul_i32 s14, s{sQG}, 3072
    s_add_u32 s3, s3, s14
    s_add_u32 s3, s3, {WS_K}
    v_add_u32 v{vDM}, s3, v{vL16}
    v_add_u32 v{vDM+1}, 1024, v{vDM}
    v_add_u32 v{vDM+2}, 2048, v{vDM}
    s_mov_b32 s97, 2048
    s_branch {L('dmago')}
    """)
    A.label(L('vdma'))
    A(f"""
    s_sub_u32 s3, s{sQG}, 2
    s_mul_i32 s3, s3, 192
    s_mul_i32 s14, s{sHD}, 320
    s_add_u32 s14, s14, {WS_V}
    s_cmp_eq_u32 s{sQG}, 3
    s_mov_b32 s97, 2048
    s_cmov_b32 s97, 1024
    s_cselect_b32 s15, 64, 128
    """)
    for k in range(3):
        if k < 2: A(f"v_add_u32 v{T0+2}, {64*k}, v0")
        else: A(f"v_add_u32 v{T0+2}, s15, v0")
        A(f"""
        v_add_u32 v{T0+2}, s3, v{T0+2}
        v_mul_u32_u24 v{T0+3}, 3277, v{T0+2}
        v_lshrrev_b32 v{T0+3}, 16, v{T0+3}
        v_mul_u32_u24 v{T0+4}, 20, v{T0+3}
        v_sub_u32 v{T0+2}, v{T0+2}, v{T0+4}
        v_mul_u32_u24 v{T0+3}, 10240, v{T0+3}
        v_lshl_add_u32 v{T0+3}, v{T0+2}, 4, v{T0+3}
        v_add_u32 v{vDM+k}, s14, v{T0+3}
        """)
    A.label(L('dmago'))
    A(f"""
    s_lshl_b32 s3, s{sQB}, 1
    s_lshr_b32 s14, s{sQG}, 1
    s_add_u32 s3, s3, s14
    s_mul_i32 s3, s3, 163840
    s_add_u32 s3, s3, s96
    s_and_b32 s14, s{sQG}, 1
    s_lshl_b32 s14, s14, 10
    s_add_u32 s3, s3, s14
    s_lshl_b32 s14, s{sKH}, 9
    s_add_u32 s98, s3, s14
    s_sub_u32 s99, s3, s14
    s_add_u32 s99, s99, 512
    s_mul_i32 s3, s{sODD}, 6144
    v_lshlrev_b32 v{T0+2}, 4, v{T0}
    v_lshl_add_u32 v{T0+3}, v{T0+1}, 11, v{T0+2}
    v_add_u32 v{T0+3}, s3, v{T0+3}
    s_lshl_b32 s3, s{sODD}, 3
    s_add_u32 s3, s3, 4096
    v_add_u32 v{T0+2}, s3, v{T0+2}
    v_mov_b32 v{vIDX}, 0xdddddddd
    """)
    sPJ, sPB, sPP, sPD0, sP1, sP2, sPC = 100, 101, 54, 55, 46, 47, 52
    A(f"""
    s_mul_i32 s3, s2, 7
    s_add_u32 s3, s3, s{sW}
    s_sub_u32 s3, s3, 1
    s_cmp_eq_u32 s{sW}, 0
    s_cmov_b32 s3, 1790
    s_mov_b32 s{sPC}, 0x40000000
    s_cmp_lt_u32 s3, 960
    s_cbranch_scc1 {L('pgu')}
    s_sub_u32 s3, s3, 960
    s_mov_b32 s{sPP}, 1280
    s_mul_i32 s14, s3, 6554
    s_lshr_b32 s14, s14, 16
    s_mul_i32 s15, s14, 10
    s_sub_u32 s15, s3, s15
    s_lshl_b32 s{sPD0}, s15, 2
    s_mov_b32 s10, 13108
    s_mov_b32 s11, 5
    s_cmp_lt_u32 s14, 48
    s_cbranch_scc0 {L('pwo')}
    """)
    srd(A, SA, pWD, WD_BYTES)
    A(f"""
    s_mov_b32 s{sPJ}, 4
    s_mov_b32 s{sP1}, {8*1280}
    s_mov_b32 s{sP2}, {16*1280}
    s_mul_i32 s{sPB}, s14, {32*1280}
    s_mov_b32 s12, 245760
    s_mul_i32 s13, s14, 5120
    s_add_u32 s13, s13, {WS_WD}
    s_branch {L('pdone')}
    """)
    A.label(L('pwo'))
    srd(A, SA, pWO, WO_BYTES)
    A(f"""
    s_sub_u32 s14, s14, 48
    s_mov_b32 s12, 102400
    s_cmp_lt_u32 s14, 16
    s_cbranch_scc0 {L('pwob')}
    s_mov_b32 s{sPJ}, 8
    s_mov_b32 s{sP1}, {4*1280}
    s_mov_b32 s{sP2}, {20*1280}
    s_mul_i32 s{sPB}, s14, {40*1280}
    s_lshr_b32 s3, s14, 3
    s_and_b32 s14, s14, 7
    s_branch {L('pwoc')}
    """)
    A.label(L('pwob'))
    A(f"""
    s_sub_u32 s14, s14, 16
    s_mov_b32 s{sPJ}, 20
    s_mov_b32 s{sP1}, {40*1280}
    s_mov_b32 s{sP2}, {80*1280}
    s_mul_i32 s{sPB}, s14, {160*1280}
    s_add_u32 s{sPB}, s{sPB}, {16*1280}
    s_lshr_b32 s3, s14, 1
    s_and_b32 s14, s14, 1
    s_add_u32 s14, s14, 8
    """)
    A.label(L('pwoc'))
    A(f"""
    s_mul_i32 s13, s3, 7
    s_add_u32 s13, s13, 6
    s_mul_i32 s15, s3, 3
    s_sub_u32 s15, s15, 7
    s_cmp_ge_u32 s14, 7
    s_cselect_b32 s13, s15, s13
    s_add_u32 s13, s13, s14
    s_mul_i32 s13, s13, 5120
    s_add_u32 s13, s13, {WS_WO}
    s_cmp_lt_u32 s3, 2
    s_cbranch_scc1 {L('pdone')}
    s_mov_b32 s{SA+2}, 0
    s_mov_b32 s13, 0x40000000
    s_branch {L('pdone')}
    """)
    A.label(L('pgu'))
    A(f"""
    s_cmp_ge_u32 s3, 480
    s_cselect_b32 s{SA}, s{pWU}, s{pWG}
    s_cselect_b32 s{SA+1}, s{pWU+1}, s{pWG+1}
    s_cselect_b32 s13, 6144, 0
    s_cselect_b32 s14, 480, 0
    s_mov_b32 s{SA+2}, {WG_BYTES}
    s_mov_b32 s{SA+3}, 0x00020000
    s_sub_u32 s3, s3, s14
    s_mul_i32 s14, s3, 2731
    s_lshr_b32 s14, s14, 16
    s_mul_i32 s15, s14, 24
    s_sub_u32 s15, s3, s15
    s_lshl_b32 s{sPD0}, s15, 2
    s_mov_b32 s{sPP}, 3072
    s_mov_b32 s{sPJ}, 4
    s_mov_b32 s{sP1}, {8*3072}
    s_mov_b32 s{sP2}, {16*3072}
    s_mul_i32 s{sPB}, s14, {32*3072}
    s_mov_b32 s10, 10923
    s_mov_b32 s11, 6
    s_mov_b32 s12, 245760
    s_mul_i32 s14, s14, 12288
    s_add_u32 s13, s13, s14
    s_lshl_b32 s{sPC}, s15, 8
    s_add_u32 s{sPC}, s{sPC}, s13
    s_add_u32 s{sPC}, s{sPC}, {WS_CS}
    s_add_u32 s13, s13, {WS_WGU}
    """)
    A.label(L('pdone'))
    vPL = 165
    sD = 58
    sE0 = 62
    A(f"""
    v_mul_u32_u24 v{vPL}, s{sPJ}, v{T0+1}
    v_bfe_u32 v{T0+5}, v0, 3, 2
    v_add_u32 v{vPL}, v{vPL}, v{T0+5}
    v_mul_u32_u24 v{vPL}, s{sPP}, v{vPL}
    v_and_b32 v{T0+5}, 7, v0
    v_lshl_add_u32 v{vPL}, v{T0+5}, 4, v{vPL}
    s_lshl_b32 s3, s{sPD0}, 5
    s_add_u32 s3, s3, s{sPB}
    v_add_u32 v{vPL}, s3, v{vPL}
    s_lshl_b32 s{sPB}, s{sW}, 12
    s_add_u32 s{sPB}, s{sPB}, {PREP_LDS}
    v_lshrrev_b32 v{T0+5}, 4, v0
    v_bfe_u32 v{T0+6}, v0, 2, 2
    v_lshl_add_u32 v{T0+5}, v{T0+5}, 3, v{T0+6}
    v_lshlrev_b32 v{T0+5}, 7, v{T0+5}
    v_and_b32 v{T0+6}, 3, v0
    v_lshl_add_u32 v{T0+5}, v{T0+6}, 3, v{T0+5}
    v_add_u32 v{vPA}, s{sPB}, v{T0+5}
    s_mov_b32 s{sPJ}, s{sPC}
    s_add_u32 s{sPP}, s{sP1}, s{sP2}
    """)
    sPC = sPJ; sP3 = sPP; sPM = sPB
    for f in range(4):
        A(f"""
        s_add_u32 s3, s{sPD0}, {f}
        s_mul_i32 s14, s3, s10
        s_lshr_b32 s14, s14, 16
        s_mul_i32 s15, s14, s11
        s_sub_u32 s3, s3, s15
        s_mul_i32 s14, s14, s12
        s_lshl_b32 s3, s3, 10
        s_add_u32 s3, s3, s14
        s_add_u32 s{sD+f}, s3, s13
        """)
    srd(A, SB_, pX, X_BYTES)
    vXA, vCN, vCV, vTO, vL4, vWO = 202, 200, 201, 203, 204, 205
    sWOM, sONE = 10, 11
    A(f"""
    s_lshl_b32 s3, s{sRT64}, 2
    s_add_u32 s3, s3, s{sQG}
    s_mul_i32 s3, s3, {16*1280}
    s_mul_i32 s14, s{sCT8}, 160
    s_add_u32 s3, s3, s14
    s_lshl_b32 s14, s{sKH}, 30
    s_add_u32 s3, s3, s14
    v_and_b32 v{vXA}, 15, v0
    v_mul_u32_u24 v{vXA}, 1280, v{vXA}
    v_lshrrev_b32 v{vTO}, 4, v0
    v_lshl_add_u32 v{vXA}, v{vTO}, 3, v{vXA}
    v_add_u32 v{vXA}, s3, v{vXA}
    s_lshr_b32 s3, s2, 3
    s_lshl_b32 s3, s3, 3
    s_add_u32 s3, s3, s{sW}
    s_bfe_u32 s14, s2, 0x10002
    s_lshl_b32 s14, s14, 8
    s_add_u32 s3, s3, s14
    s_mul_i32 s3, s3, 7680
    s_add_u32 s3, s3, {WS_WGU}
    v_min_u32 v{vTO}, 5, v0
    v_lshl_add_u32 v{vTO}, v{vTO}, 7, s3
    v_add_u32 v210, 3840, v{vTO}
    v_lshlrev_b32 v{vL4}, 2, v0
    s_mul_i32 s3, s{sCT8}, 102400
    s_lshl_b32 s{sWOM}, s{sW}, 10
    s_add_u32 s3, s3, s{sWOM}
    s_add_u32 s3, s3, {WS_WO + 30720}
    v_add_u32 v{vWO}, s3, v{vL16}
    s_add_u32 s{sWOM}, s{sWOM}, {WO_LDS + 30720}
    s_cmp_ge_u32 s{sW}, 6
    s_cselect_b32 s12, 7, 8
    s_lshl_b32 s12, s12, 13
    s_add_u32 s13, s12, s{sWOM}
    s_lshl_b32 s3, s{sODD}, 11
    s_add_u32 s3, s3, s{sRING}
    v_lshlrev_b32 v{vK}, 4, v{T0}
    v_lshl_add_u32 v{vK}, v{T0+1}, 11, v{vK}
    v_add_u32 v{vK}, s3, v{vK}
    s_mul_i32 s3, s{sODD}, {8-4096}
    s_add_u32 s3, s3, 4096
    s_add_u32 s3, s3, s{sRING}
    v_add_u32 v{vKX}, s3, v{vL16}
    v_mul_u32_u24 v{vV}, 320, v{T0+1}
    v_lshl_add_u32 v{vV}, v{T0}, 4, v{vV}
    v_add_u32 v{vV}, s{sRING}, v{vV}
    s_mul_i32 s{sSO}, s{sKH}, {8*163840}
    s_add_u32 s97, s97, s{sM0}
    """)
    for i in range(16): A(f"v_mov_b32 v{VB+i}, 0x3f803f80")
    for i in range(32): A(f"v_mov_b32 v{OB+i}, 0")
    vXW, vXR, vOM, vOE = T0+4, T0+7, T0+6, T0+5
    A(f"""
    s_lshl_b32 s3, s{sQG}, 12
    s_add_u32 s14, s3, s{sRING}
    v_add_u32 v{vXW}, s14, v{vL16}
    s_sub_u32 s14, {4*SLOT}, s{sRING}
    s_add_u32 s14, s14, s3
    v_add_u32 v{vXR}, s14, v{vL16}
    s_lshl_b32 s3, s{sQB}, 4
    s_lshl_b32 s14, s{sQG}, 2
    s_add_u32 s3, s3, s14
    s_lshl_b32 s14, s{sKH}, 1
    s_add_u32 s3, s3, s14
    v_bfe_u32 v{vOE}, v0, 4, 1
    v_add_u32 v{vOE}, s3, v{vOE}
    v_mul_u32_u24 v{vOE}, 20480, v{vOE}
    v_and_b32 v{T0+8}, 15, v0
    s_lshl_b32 s3, s{sHD}, 9
    s_add_u32 s3, s3, {WS_O}
    v_lshl_add_u32 v{vOM}, v{T0+1}, 8, s3
    v_lshl_add_u32 v{vOM}, v{T0+8}, 4, v{vOM}
    v_add_u32 v{vOM}, v{vOM}, v{vOE}
    s_lshl_b32 s3, s{sHD}, 7
    s_add_u32 s3, s3, {WS_O + 16384}
    v_lshl_add_u32 v{vOE}, v{T0+8}, 3, v{vOE}
    v_add_u32 v{vOE}, s3, v{vOE}
    """)
    A(f"""
    s_cmp_lg_u32 s{sW}, 0
    s_cbranch_scc1 {L('s1w')}
    s_and_b32 s15, s2, 7
    s_lshl_b32 s15, s15, 3
    s_add_u32 s15, s15, {F1}
    """)
    poll(A, 15, 8, 1, 200)
    A.label(L('s1w'))
    A("s_barrier")
    A.st("s1")
    q = []
    def vm(tag, text):
        q.append(tag); return text
    def after(*tags):
        idx = max(k for k, e in enumerate(q) if e in tags)
        return len(q) - 1 - idx
    def dma_items(c):
        it = []
        for k in range(3):
            m = f"s_add_u32 m0, s{sM0 if k < 2 else 97}, {(c&3)*SLOT + (k*1024 if k < 2 else 0)}"
            ld = (f"ch{c}", f"buffer_load_dwordx4 v{vDM+k}, {R(SWS)}, s{sSO} offen {LDF} lds")
            it.append([m]); it.append([ld] + ([f"s_add_u32 s{sSO}, s{sSO}, 163840"] if k == 2 else []))
        return it
    def emit(item):
        for x in item:
            if isinstance(x, tuple): A(vm(*x))
            elif callable(x): x()
            else: A(x)
    for x in (f"buffer_load_dwordx4 {v(QM,4)}, v{T0+3}, {R(SWS)}, s98 offen {LDF}",
              f"buffer_load_dwordx4 {v(QM+4,4)}, v{T0+3}, {R(SWS)}, s99 offen {LDF}",
              f"buffer_load_dwordx2 {v(QA,2)}, v{T0+2}, {R(SWS)}, s98 offen {LDF}",
              f"buffer_load_dwordx2 {v(QA+2,2)}, v{T0+2}, {R(SWS)}, s99 offen {LDF}"):
        A(vm("q", x))
    A0 = int(os.environ.get("A0", "1"))
    for c in range(A0):
        for k, it in enumerate(dma_items(c)):
            emit(it)
            if k % 2 == 0: A("s_nop 0")
    A(f"""
    s_bfe_u32 s3, s2, 0x30003
    s_lshl_b32 s3, s3, 8
    s_add_u32 s3, s3, {WS_CNT + CP*256}
    v_mov_b32 v206, s3
    v_mov_b32 v207, 1
    s_add_u32 s3, s3, {(FP - CP)*256}
    v_lshl_add_u32 v212, v0, 11, s3
    v_mov_b32 v213, 1
    s_and_b32 s3, s2, 7
    s_lshl_b32 s3, s3, 11
    s_add_u32 s3, s3, {WS_CNT + FP*256}
    v_and_b32 v{vCN}, 7, v0
    v_lshl_add_u32 v{vCN}, v{vCN}, 8, s3
    s_cmp_eq_u32 s{sW}, 0
    s_cselect_b32 s62, 255, 0
    s_mov_b32 s63, 0
    s_mov_b32 s{sONE}, 0x3f803f80
    v_cmp_eq_u32 vcc, 0, v{T0+1}
    v_mov_b32 v{vCV}, 1
    s_waitcnt vmcnt({after("q")})
    """)
    for qq in range(2):
        for j in range(2):
            A(f"v_cndmask_b32 v{QB+2*qq+j}, v{QA+2*qq+j}, 0, vcc")
            A(f"v_cndmask_b32 v{QA+2*qq+j}, 0, v{QA+2*qq+j}, vcc")
    def so(g):
        return ((g >> 2) & 3) * SLOT
    def rdK(g): A(f"ds_read_b128 {v(KM+4*(g&1),4)}, v{vK} offset:{so(g) + (g&3)*512}")
    def rdKX(c, p): A(f"ds_read_b64 {v(KX+2*p,2)}, v{vKX} offset:{(c&3)*SLOT + p*1024}")
    def rdV(g):
        A(f"s_mov_b64 exec, s[{sVM}:{sVM+1}]")
        for sp in range(2):
            A(f"ds_read_b128 {v(VB+8*(g&1)+4*sp,4)}, v{vV} offset:{so(g) + 6144+(2*(g&3)+sp)*640}")
        A("s_mov_b64 exec, -1")
    def qk1(t, c0="0"):
        kt, qs = (t >> 1), t & 1
        A(f"v_mfma_f32_32x32x16_bf16 {v(SB+16*qs,16)}, {v(KM+4*(kt&1),4)}, {v(QM+4*qs,4)}, {c0}")
    def qk2(t):
        kt, qs = (t >> 1) & 3, t & 1
        Q = (QB if kt & 1 else QA) + 2*qs
        A(f"v_mfma_f32_32x32x8_bf16 {v(SB+16*qs,16)}, {v(KX+2*(kt>>1),2)}, {v(Q,2)}, {v(SB+16*qs,16)}")
    def pv(t, sp):
        kt, qs = (t >> 1), t & 1
        A(f"v_smfmac_f32_32x32x32_bf16 {v(OB+16*qs,16)}, {v(VB+8*(kt&1)+4*sp,4)}, {v(SB+16*qs+8*sp,8)}, v{vIDX}")
    def ex(t, a_, b_):
        for i in range(a_, b_): A(f"v_exp_f32 v{SB+16*(t&1)+i}, v{SB+16*(t&1)+i}")
    A(f"s_waitcnt vmcnt({after('ch0')})")
    A("s_barrier")
    A.st("a0")
    rdK(0); rdKX(0, 0); rdK(1); rdKX(0, 1); rdV(0)
    for c in range(A0, 2):
        for k, it in enumerate(dma_items(c)):
            emit(it)
            if k % 2 == 0: A("s_nop 0")
    A("s_waitcnt lgkmcnt(4)")
    qk1(0); qk2(0)
    A("s_waitcnt lgkmcnt(0)")
    A("s_nop 10")
    side = {}
    def put(T, items): side.setdefault(T, []).extend(items)
    put(0, dma_items(2) + dma_items(3))
    prep = []
    for k, sofs in enumerate(("0", f"s{sP1}", f"s{sP2}", f"s{sP3}")):
        prep += [[f"s_add_u32 m0, s{sPM}, {k*1024}"], [("prep", f"buffer_load_dwordx4 v{vPL}, {R(SA)}, {sofs} offen lds")]]
    put(3, prep)
    put(TX4 := (13 if int(os.environ.get("TD", "28")) > 20 else 21), [])
    TXL = int(os.environ.get("TXL", "15")); TXS = int(os.environ.get("TXS", "1"))
    for mt in range(5):
        put(TXL + (mt*TXS)//2, [[("x", f"buffer_load_dwordx2 {v(XR+2*mt,2)}, v{vXA}, {R(SB_)}, 0 offen offset:{mt*32}")]])
    TP = int(os.environ.get("TP", "19"))
    TD = int(os.environ.get("TD", "28"))
    put(TP, [[lambda: A(f"s_waitcnt vmcnt({after('prep')})")] + [f"ds_read_b64_tr_b16 {v(PR+2*u,2)}, v{vPA} offset:{u*512}" for u in range(2)]] +
            [[f"ds_read_b64_tr_b16 {v(PR+4*f+2*u,2)}, v{vPA} offset:{u*512 + f*32}" for u in range(2)] for f in range(1, 4)])
    put(TP+1, [[("pst", f"buffer_store_dwordx4 {v(PR+4*f,4)}, v{vL16}, {R(SWS)}, s{sD+f} offen {STF}")] for f in range(4)])
    put(TP+2, [[f"v_dot2_f32_bf16 v{PR+16+f}, v{PR+4*f+j}, s{sONE}, {'0' if j == 0 else 'v%d' % (PR+16+f)}" for f in range(4)] for j in range(4)])
    put(TP+3, [[f"v_permlane16_swap_b32 v{PR+16}, v{PR+17}", f"v_permlane16_swap_b32 v{PR+18}, v{PR+19}",
              f"v_add_f32 v{PR+16}, v{PR+16}, v{PR+17}", f"v_add_f32 v{PR+18}, v{PR+18}, v{PR+19}"],
             [f"v_permlane32_swap_b32 v{PR+16}, v{PR+18}", f"v_add_f32 v{PR+16}, v{PR+16}, v{PR+18}",
              ("pst", f"buffer_store_dword v{PR+16}, v{vL4}, {R(SWS)}, s{sPC} offen {STF}")]])
    put(TD+1, [["s_and_b64 exec, s[62:63], 1", ("arr", f"buffer_atomic_add v207, v206, {R(SWS)}, 0 offen sc0 sc1"), "s_mov_b64 exec, -1"]])
    put(TX4, dma_items(4))
    put(29, dma_items(5) + dma_items(6))
    put(TD+4, [[lambda: A(f"s_waitcnt vmcnt({after('arr')})"), "v_cmp_eq_u32 vcc, 31, v207", "s_cmp_lg_u64 vcc, 0", "s_cselect_b64 exec, s[62:63], 0",
             ("flg", f"buffer_store_dword v213, v212, {R(SWS)}, 0 offen sc1"), "s_mov_b64 exec, -1"]])
    put(37, dma_items(7))
    TC = int(os.environ.get("TC", "40"))
    put(TC-2, [["s_mov_b64 exec, s[62:63]", ("poll", f"buffer_load_dword v{vCV}, v{vCN}, {R(SWS)}, 0 offen sc1"), "s_mov_b64 exec, -1"]])
    WO0 = int(os.environ.get("WO0", TC+2)); WOS = int(os.environ.get("WOS", "2"))
    for k in range(9):
        if k < 8:
            it = [[f"s_add_u32 m0, s{sWOM}, {k*8192}", f"s_mov_b32 s3, {k*8192}"], [("wo", f"buffer_load_dwordx4 v{vWO}, {R(SWS)}, s3 offen {LDF} lds")]]
        else:
            it = [["s_mov_b32 m0, s13"], [("wo", f"buffer_load_dwordx4 v{vWO}, {R(SWS)}, s12 offen {LDF} lds")]]
        put(WO0 + WOS*k, it)
    TO0 = int(os.environ.get("TO0", TC+1)); TOS = int(os.environ.get("TOS", "2"))
    for k in range(0 if "notouch" in OPT else 10):
        put(TO0 + TOS*k, [[("touch", f"buffer_load_dword v{214+k}, v{vTO if k < 5 else 210}, {R(SWS)}, 0 offen offset:{(k%5)*768} {LDF}")]])
    waits = {4: ("ch1",), 12: ("ch2", "ch3"), 28: ("ch4",), 36: ("ch5", "ch6"), 52: ("ch7",)}
    waits[TD] = waits.get(TD, ()) + ("pst",)
    waits[TC] = waits.get(TC, ()) + ("poll",)
    PRIO = os.environ.get("PRIO", "8")
    prio = {}
    if PRIO == "8":
        for T in (20, 44, 60): waits.setdefault(T, ())
        for T in range(5, 64, 2): prio[T] = 3 - (((T - 5) >> 1) & 3)
        prio[0] = 2; prio[1] = 1; prio[3] = 0
        prio[61] = 2; prio[62] = 1; prio[63] = 0
    elif PRIO == "4":
        for T in range(8, 64, 4): waits.setdefault(T, ())
        for T in range(1, 64): prio[T] = 3 - ((T - 1) & 3)
        prio[0] = 3
    assert max(side) < 63
    pend = []
    def slot():
        if pend: emit(pend.pop(0))
    for T in range(64):
        c, t = T >> 3, T & 7
        pend += side.get(T, [])
        if T > 0: pv(T-1, 1)
        if T in prio: A(f"s_setprio {prio[T]}")
        slot()
        ex(T, 0, 4)
        if T < 63: qk1(T+1)
        slot()
        ex(T, 4, 8)
        if T < 63: qk2(T+1)
        slot()
        ex(T, 8, 12)
        pv(T, 0)
        if T in waits:
            if waits[T]: A(f"s_waitcnt vmcnt({after(*waits[T])})")
            if T == TD: A("s_waitcnt vmcnt(0)")
            if T == TC:
                assert not pend
                A(f"""
                v_cmp_le_u32 vcc, 1, v{vCV}
                s_cmp_eq_u64 vcc, -1
                s_cbranch_scc0 {L('cpwait')}
                """)
                A.label(L('cpback'))
            A("s_barrier")
            if t == 4: A.st(f"it{c}")
        else: slot()
        ex(T, 12, 16)
        A("s_waitcnt lgkmcnt(0)")
        g = T >> 1
        n0 = len(A.lines)
        if t & 1 == 0:
            if g + 1 < 32: rdV(g + 1)
        else:
            if g + 2 < 32: rdK(g + 2)
            if t == 5 and c < 7: rdKX(c+1, 0)
            if t == 7 and c < 7: rdKX(c+1, 1)
        if len(A.lines) == n0: A("s_nop 0")
    assert not pend
    pv(63, 1)
    A.st("aend")
    A.label(L('epi'))
    A("s_setprio 0")
    A("s_nop 10")
    for i in range(4): A(f"ds_write_b128 v{vXW}, {v(OB+16+4*i,4)} offset:{i*1024}")
    A(f"""
    s_waitcnt lgkmcnt(0)
    s_barrier
    """)
    A.st("ax2")
    for i in (3, 0, 1, 2): A(f"ds_read_b128 {v(SB+4*i,4)}, v{vXR} offset:{i*1024}")
    A("s_waitcnt lgkmcnt(3)")
    A(f"v_add_f32 v{OB+12}, v{OB+12}, v{SB+12}")
    A(f"v_rcp_f32 v{OB+14}, v{OB+12}")
    A("s_waitcnt lgkmcnt(0)")
    for i in range(0, 12, 2): A(f"v_pk_add_f32 {v(OB+i,2)}, {v(OB+i,2)}, {v(SB+i,2)}")
    for i in range(0, 12, 2): A(f"v_pk_mul_f32 {v(OB+i,2)}, {v(OB+i,2)}, {v(OB+14,2)} op_sel_hi:[1,0]")
    for i in range(6): A(f"v_cvt_pk_bf16_f32 v{SB+i}, v{OB+2*i}, v{OB+2*i+1}")
    A(f"""
    buffer_store_dwordx4 {v(SB,4)}, v{vOM}, {R(SWS)}, 0 offen {STF}
    s_mov_b32 exec_hi, 0
    buffer_store_dwordx2 {v(SB+4,2)}, v{vOE}, {R(SWS)}, 0 offen {STF}
    s_mov_b64 exec, -1
    v_mov_b32 v{T0+9}, 0
    """)
    A.st("ast")
    for i in range(12): A(f"v_fmac_f32 v{T0+9}, 0, v{OB+i}")
    FLG = 20480
    A(f"""
    v_cmp_u_f32 s[14:15], v{T0+9}, v{T0+9}
    s_mov_b32 s3, {hex(f32bits(2.0**-40))}
    v_cmp_nle_f32 vcc, s3, v{OB+12}
    s_or_b64 s[14:15], s[14:15], vcc
    s_mov_b32 s3, {hex(f32bits(2.0**40))}
    v_cmp_nge_f32 vcc, s3, v{OB+12}
    s_or_b64 s[14:15], s[14:15], vcc
    s_cselect_b32 s3, 1, 0
    v_mov_b32 v{T0+9}, s3
    s_lshl_b32 s3, s{sW}, 2
    v_mov_b32 v{T0+8}, s3
    ds_write_b32 v{T0+8}, v{T0+9} offset:{FLG}
    v_and_b32 v{T0+8}, 28, v{vL4}
    s_waitcnt vmcnt(0) lgkmcnt(0)
    s_barrier
    ds_read_b32 v{T0+9}, v{T0+8} offset:{FLG}
    s_waitcnt lgkmcnt(0)
    v_cmp_ne_u32 vcc, 0, v{T0+9}
    s_cmp_eq_u64 vcc, 0
    s_cbranch_scc1 {L('done')}
    s_cmp_lg_u32 s{sMODE}, 0
    s_cbranch_scc1 {L('done')}
    s_mov_b32 s{sMODE}, 1
    s_barrier
    """)
    MX = T0 + 10
    A(f"""
    v_mov_b32 v{MX}, 0xff800000
    v_mov_b32 v{MX+1}, 0xff800000
    s_add_u32 s15, s96, {WS_K}
    s_mov_b32 s{sCNT}, 0
    """)
    A.label(L('mloop'))
    for kt in range(4):
        A(f"buffer_load_dwordx4 {v(KM,4)}, v{T0+3}, {R(SWS)}, s15 offen offset:{kt*512} {LDF}")
        A(f"buffer_load_dwordx2 {v(KX,2)}, v{T0+2}, {R(SWS)}, s15 offen offset:{kt*512} {LDF}")
        A("s_waitcnt vmcnt(0)")
        for qs in range(2):
            A(f"v_mfma_f32_32x32x16_bf16 {v(CI+16*qs,16)}, {v(KM,4)}, {v(QM+4*qs,4)}, 0")
            A(f"v_mfma_f32_32x32x8_bf16 {v(CI+16*qs,16)}, {v(KX,2)}, {v(QA+2*qs,2)}, {v(CI+16*qs,16)}")
        A("s_nop 15")
        for qs in range(2):
            for i in range(8):
                A(f"v_max3_f32 v{MX+qs}, v{CI+16*qs+2*i}, v{CI+16*qs+2*i+1}, v{MX+qs}")
    A(f"""
    s_add_u32 s15, s15, 163840
    s_add_u32 s{sCNT}, s{sCNT}, 1
    s_cmp_lt_u32 s{sCNT}, 16
    s_cbranch_scc1 {L('mloop')}
    v_mov_b32 v{T0+9}, v{MX}
    v_mov_b32 v{T0+8}, v{MX+1}
    s_nop 1
    v_permlane32_swap_b32 v{T0+9}, v{MX}
    v_permlane32_swap_b32 v{T0+8}, v{MX+1}
    v_max_f32 v{MX}, v{MX}, v{T0+9}
    v_max_f32 v{MX+1}, v{MX+1}, v{T0+8}
    """)
    for qs in range(2):
        for i in range(16): A(f"v_sub_f32 v{CI+16*qs+i}, 0, v{MX+qs}")
    for i in range(32): A(f"v_mov_b32 v{OB+i}, 0")
    A(f"""
    s_mul_i32 s14, s{sKH}, {8*163840}
    s_add_u32 s15, s96, {WS_K}
    s_add_u32 s15, s15, s14
    s_mul_i32 s3, s{sHD}, 320
    s_add_u32 s14, s14, s3
    s_add_u32 s14, s14, {WS_V}
    v_mul_u32_u24 v{T0+8}, 10240, v{T0+1}
    v_lshl_add_u32 v{T0+8}, v{T0}, 4, v{T0+8}
    v_add_u32 v{T0+9}, 20480, v{T0+8}
    s_mov_b32 s{sCNT}, 0
    """)
    A.label(L('floop'))
    A(f"""
    buffer_load_dwordx4 {v(KM,4)}, v{T0+3}, {R(SWS)}, s15 offen {LDF}
    buffer_load_dwordx2 {v(KX,2)}, v{T0+2}, {R(SWS)}, s15 offen {LDF}
    s_mov_b64 exec, s[{sVM}:{sVM+1}]
    buffer_load_dwordx4 {v(VB,4)}, v{T0+8}, {R(SWS)}, s14 offen {LDF}
    buffer_load_dwordx4 {v(VB+4,4)}, v{T0+9}, {R(SWS)}, s14 offen {LDF}
    s_mov_b64 exec, -1
    s_waitcnt vmcnt(0)
    """)
    for qs in range(2):
        qk1(qs, v(CI+16*qs, 16)); qk2(qs)
    A("s_nop 15")
    for qs in range(2): ex(qs, 0, 16)
    A("s_nop 1")
    for qs in range(2):
        pv(qs, 0); pv(qs, 1)
    A(f"""
    s_add_u32 s14, s14, 40960
    s_add_u32 s15, s15, 512
    s_add_u32 s{sCNT}, s{sCNT}, 1
    s_and_b32 s3, s{sCNT}, 3
    s_cmp_eq_u32 s3, 0
    s_cselect_b32 s3, {163840 - 2048}, 0
    s_add_u32 s15, s15, s3
    s_cmp_lt_u32 s{sCNT}, 32
    s_cbranch_scc1 {L('floop')}
    s_branch {L('epi')}
    """)
    A.label(L('cpwait'))
    A(f"""
    s_and_b32 s15, s2, 7
    s_lshl_b32 s15, s15, 3
    s_add_u32 s15, s15, {FP}
    """)
    poll(A, 15, 8, 1, 200)
    A(f"s_branch {L('cpback')}")
    A.label(L('done'))
    A.st("adrain")
    A(f"""
    s_cmp_lg_u32 s{sW}, 0
    s_cbranch_scc1 {L('s2a')}
    s_lshl_b32 s15, s{sQB}, 1
    s_add_u32 s15, s15, s{sODD}
    """)
    if 'L' in TREE:
        A(f"s_lshl_b32 s15, s{sQB}, 5")
        A(f"s_add_u32 s15, s15, s{sHD}")
        signal(A, 0, 15, 200)
    elif '2' in TREE: arrive_tree(A, 15, A2, C2, 15, 1, 200)
    else:
        A(f"s_add_u32 s15, s15, {C2}")
        arrive(A, 15, 200)
    A.label(L('s2a'))
```

```python
from mcommon import *
from m2 import XR, WO_LDS, sRT64, sCT8, CS_LDS
WR = 160
CS = 216
sNT, sKH = 43, 44
sRT128, sCT16 = 40, 41
SLOT4 = 40960

def issueW4(A, c):
    for i in range(6):
        A(f"s_add_u32 m0, s46, {(c%4)*SLOT4 + 16384 + i*1024}")
        A(f"s_add_u32 s3, s49, {i*1024}")
        A(f"buffer_load_dwordx4 v4, {R(SWS)}, s3 offen {LDF} lds")
    A(f"""
    s_add_u32 s49, s49, 24576
    s_cmp_eq_u32 s49, 245760
    s_cmov_b32 s49, 0
    """)

def issueD(A, j):
    for i in range(10):
        A(f"s_add_u32 m0, s50, {((2+j)%4)*SLOT4 + i*1024}")
        A(f"s_mov_b32 s3, {j*20480 + i*1024}")
        A(f"buffer_load_dwordx4 v6, {R(SWS)}, s3 offen {LDF} lds")

def gen_p3(A):
    L = lambda x: f"L3_{x}"
    vL16 = 2
    vWA, vWB, vOX = 4, 5, 6
    OF = 32
    WF = 72
    ACC = 132
    A(f"""
    s_cmp_eq_u32 s{sW}, 0
    s_cbranch_scc1 {L('setup')}
    s_cmp_lt_u32 s{sW}, 4
    s_cbranch_scc1 {L('pcs')}
    s_lshl_b32 s15, s{sNT}, 10
    s_mul_i32 s14, s{sCT8}, 102400
    s_add_u32 s14, s14, s15
    s_add_u32 s14, s14, {WS_WO}
    """)
    for k in range(8):
        if k == 7:
            A(f"s_cmp_ge_u32 s{sNT}, 2")
            A(f"s_cbranch_scc1 {L('setup')}")
        A(f"s_add_u32 m0, s15, {WO_LDS + k*4096}")
        A("s_nop 0")
        A(f"buffer_load_dwordx4 v{vL16}, {R(SWS)}, s14 offen {LDF} lds")
        A("s_add_u32 s14, s14, 4096")
    A(f"s_branch {L('setup')}")
    A.label(L('pcs'))
    A(f"""
    s_sub_u32 s3, s{sW}, 1
    s_lshl_b32 s3, s3, 6
    v_add_u32 v10, s3, v0
    v_cmp_le_u32 vcc, 96, v10
    v_mov_b32 v11, {6144 - 384}
    v_lshlrev_b32 v10, 2, v10
    v_cndmask_b32 v11, 0, v11, vcc
    v_add_u32 v11, v11, v10
    s_bfe_u32 s15, s2, 0x10002
    s_lshl_b32 s15, s15, 3
    s_lshr_b32 s14, s2, 5
    s_add_u32 s15, s15, s14
    s_mul_i32 s15, s15, 384
    s_add_u32 s15, s15, {WS_CS}
    """)
    for k in range(20):
        A(f"buffer_load_dword v{32+k}, v11, {R(SWS)}, s15 offen {LDF}")
        if k < 19: A("s_add_u32 s15, s15, 12288")
    A("s_waitcnt vmcnt(0)")
    for k in range(1, 20): A(f"v_add_f32 v32, v32, v{32+k}")
    A(f"ds_write_b32 v10, v32 offset:{CS_LDS}")
    A.label(L('setup'))
    sOO, sTG = 46, 47
    A(f"""
    s_lshl_b32 s{sTG}, s{sRT64}, 2
    s_add_u32 s{sTG}, s{sTG}, s{sNT}
    s_mul_i32 s{sOO}, s{sTG}, 20480
    s_add_u32 s{sOO}, s{sOO}, {WS_O}
    s_lshl_b32 s3, s{sKH}, 13
    s_add_u32 s48, s{sOO}, s3
    s_add_u32 s49, s48, 4096
    s_lshl_b32 s3, s{sKH}, 11
    s_add_u32 s50, s{sOO}, s3
    s_add_u32 s50, s50, 16384
    v_lshrrev_b32 v7, 4, v0
    v_and_b32 v8, 15, v0
    v_lshlrev_b32 v{vOX}, 8, v7
    v_lshl_add_u32 v{vOX}, v8, 3, v{vOX}
    s_mul_i32 s3, s{sKH}, {7*5120}
    s_add_u32 s3, s3, {WO_LDS + 30720}
    v_add_u32 v{vWA}, s3, v{vL16}
    s_mul_i32 s3, s{sKH}, {3*5120}
    s_add_u32 s3, s3, {WO_LDS}
    v_add_u32 v{vWB}, s3, v{vL16}
    s_and_b32 s3, s2, 3
    s_lshl_b32 s3, s3, 2
    s_bfe_u32 s14, s2, 0x20003
    s_add_u32 s{sRT128}, s3, s14
    s_bfe_u32 s3, s2, 0x10002
    s_lshl_b32 s3, s3, 3
    s_lshr_b32 s14, s2, 5
    s_add_u32 s{sCT16}, s3, s14
    s_and_b32 s3, s{sW}, 1
    s_mul_i32 s3, s3, 192
    s_add_u32 s3, s3, {CS_LDS}
    v_lshl_add_u32 v9, v7, 4, s3
    """)
    A(f"""
    s_cmp_lg_u32 s{sW}, 0
    s_cbranch_scc1 {L('nopoll')}
    s_lshr_b32 s15, s{sRT64}, 2
    s_lshl_b32 s15, s15, 5
    """)
    waitfl(A, 0, 15, 32, 200)
    A.label(L('nopoll'))
    A("""
    s_waitcnt vmcnt(0) lgkmcnt(0)
    s_barrier
    """)
    A.st("s2")
    for i in range(8):
        A(f"buffer_load_dwordx4 {v(OF+4*i,4)}, v{vL16}, {R(SWS)}, s{48 + (i>>2)} offen offset:{(i&3)*1024} {LDF}")
    for e in range(2):
        for u in range(2):
            A(f"buffer_load_dwordx2 {v(OF+32+4*e+2*u,2)}, v{vOX}, {R(SWS)}, s50 offen offset:{e*1024 + u*128} {LDF}")
    def wreads(i):
        return [f"ds_read_b128 {v(WF+20*(i%3)+4*mt,4)}, v{vWA if i < 7 else vWB} offset:{(i if i < 7 else i-7)*5120 + mt*1024}" for mt in range(5)]
    for m in range(2):
        for mt in range(3):
            A(f"ds_read_b128 {v(CS+12*m+4*mt,4)}, v9 offset:{m*384 + mt*64}")
    for x in wreads(0) + wreads(1): A(x)
    for i in range(10):
        n = (11 - i) if i < 8 else (2 if i == 8 else 0)
        A(f"s_waitcnt vmcnt({n}) lgkmcnt({5 if i < 9 else 0})")
        if i == 1: A.st("p3i1")
        r = wreads(i+2) if i < 8 else [None]*5
        for mt in range(5):
            acc = v(ACC+4*mt, 4)
            A(f"v_mfma_f32_16x16x32_bf16 {acc}, {v(WF+20*(i%3)+4*mt,4)}, {v(OF+4*i,4)}, {'0' if i==0 else acc}")
            if r[mt]: A(r[mt])
    A.st("p3end")
    A(f"""
    s_mul_i32 s3, s{sNT}, 5120
    s_cmp_eq_u32 s{sNT}, 3
    s_cmov_b32 s3, {SLOT4}
    v_add_u32 v20, s3, v{vL16}
    s_cmp_eq_u32 s{sKH}, 0
    s_cbranch_scc1 {L('fin')}
    s_nop 4
    """)
    for mt in range(5): A(f"ds_write_b128 v20, {v(ACC+4*mt,4)} offset:{mt*1024}")
    A("""
    s_waitcnt lgkmcnt(0)
    s_barrier
    """)
    A(f"""
    s_mul_i32 s46, s{sNT}, 6144
    s_mul_i32 s47, s{sCT16}, 245760
    s_add_u32 s47, s47, s46
    s_add_u32 s47, s47, {WS_WGU}
    v_add_u32 v4, s47, v{vL16}
    s_and_b32 s3, s{sCT16}, 7
    s_mul_i32 s3, s3, 10
    s_lshr_b32 s3, s3, 3
    s_and_b32 s14, s{sRT128}, 3
    s_mul_i32 s14, s14, 10
    s_lshr_b32 s14, s14, 2
    s_add_u32 s3, s3, s14
    s_cmp_ge_u32 s3, 10
    s_cselect_b32 s14, 10, 0
    s_sub_u32 s3, s3, s14
    """)
    if "norot4" in OPT: A("s_mov_b32 s3, 0")
    A(f"""
    s_lshl_b32 s48, s3, 11
    s_mul_i32 s49, s3, 24576
    """)
    NPRE = int(os.environ.get("NPRE3", "1"))
    for c in range(4):
        if c == NPRE: A("s_barrier")
        issueW4(A, c)
    if NPRE >= 4: A("s_barrier")
    A(f"s_branch {L('done')}")
    A.label(L('fin'))
    A(f"""
    s_mul_i32 s14, s{sTG}, 20480
    s_mul_i32 s3, s{sCT8}, 2560
    s_add_u32 s14, s14, s3
    s_add_u32 s14, s14, {WS_H}
    v_and_b32 v21, 1, v7
    v_lshlrev_b32 v21, 9, v21
    v_lshrrev_b32 v22, 1, v7
    v_lshl_add_u32 v21, v22, 8, v21
    v_lshl_add_u32 v21, v8, 4, v21
    s_lshl_b32 s15, s{sTG}, 10
    s_lshl_b32 s3, s{sCT8}, 7
    s_add_u32 s15, s15, s3
    s_add_u32 s15, s15, {WS_ST}
    v_lshlrev_b32 v22, 3, v8
    v_mov_b32 v28, 0
    v_mov_b32 v29, 0
    s_mov_b32 s53, 0x3f803f80
    """)
    for mt in range(5):
        A(f"""
        v_lshlrev_b32 v{OF+4*mt}, 16, v{XR+2*mt}
        v_and_b32 v{OF+4*mt+1}, 0xffff0000, v{XR+2*mt}
        v_lshlrev_b32 v{OF+4*mt+2}, 16, v{XR+2*mt+1}
        v_and_b32 v{OF+4*mt+3}, 0xffff0000, v{XR+2*mt+1}
        """)
    for r in range(20): A(f"v_add_f32 v{ACC+r}, v{ACC+r}, v{OF+r}")
    A("s_barrier")
    A.st("p3red")
    for mt in range(5): A(f"ds_read_b128 {v(WF+4*mt,4)}, v20 offset:{mt*1024}")
    for mt in range(5):
        A(f"s_waitcnt lgkmcnt({4-mt})")
        for j in range(4): A(f"v_add_f32 v{ACC+4*mt+j}, v{ACC+4*mt+j}, v{WF+4*mt+j}")
        A(f"v_cvt_pk_bf16_f32 v{XR+2*mt}, v{ACC+4*mt}, v{ACC+4*mt+1}")
        A(f"v_cvt_pk_bf16_f32 v{XR+2*mt+1}, v{ACC+4*mt+2}, v{ACC+4*mt+3}")
    for r in range(10): A(f"v_mov_b32 v{OF+r}, v{XR+r}")
    A(f"v_mov_b32 v{OF+10}, v{XR+8}")
    A(f"v_mov_b32 v{OF+11}, v{XR+9}")
    for p in range(3):
        if p == 2: A("s_nop 0")
        A(f"v_permlane16_swap_b32 v{OF+4*p}, v{OF+4*p+2}")
        A(f"v_permlane16_swap_b32 v{OF+4*p+1}, v{OF+4*p+3}")
    A(f"""
    buffer_store_dwordx4 {v(OF,4)}, v21, {R(SWS)}, s14 offen {STF}
    buffer_store_dwordx4 {v(OF+4,4)}, v21, {R(SWS)}, s14 offen offset:1024 {STF}
    s_mov_b32 exec_lo, 0xffff
    s_mov_b32 exec_hi, 0xffff
    buffer_store_dwordx4 {v(OF+8,4)}, v21, {R(SWS)}, s14 offen offset:2048 {STF}
    s_mov_b64 exec, -1
    """)
    for r in range(10):
        A(f"v_dot2_f32_bf16 v28, v{XR+r}, s53, v28")
        A(f"v_dot2_f32_bf16 v29, v{XR+r}, v{XR+r}, v29")
    A(f"""
    s_nop 2
    v_mov_b32 v30, v28
    v_mov_b32 v31, v29
    s_nop 1
    v_permlane32_swap_b32 v30, v28
    v_permlane32_swap_b32 v31, v29
    v_add_f32 v28, v28, v30
    v_add_f32 v29, v29, v31
    v_mov_b32 v30, v28
    v_mov_b32 v31, v29
    s_nop 1
    v_permlane16_swap_b32 v30, v28
    v_permlane16_swap_b32 v31, v29
    v_add_f32 v28, v28, v30
    v_add_f32 v29, v29, v31
    s_mov_b32 exec_lo, 0xffff
    s_mov_b32 exec_hi, 0
    buffer_store_dwordx2 v[28:29], v22, {R(SWS)}, s15 offen {STF}
    s_mov_b64 exec, -1
    """)
    A.st("p3st")
    A("""
    s_waitcnt vmcnt(0)
    s_barrier
    """)
    A.st("p3drain")
    A(f"""
    s_cmp_lg_u32 s{sW}, 0
    s_cbranch_scc1 {L('done')}
    s_lshl_b32 s15, s{sRT64}, 3
    s_add_u32 s15, s15, s{sCT8}
    """)
    signal(A, 1, 15, 200)
    A.label(L('done'))

def gen_p4(A):
    L = lambda x: f"L4_{x}"
    vL16 = 2
    A(f"s_cmp_lt_u32 s{sW}, 4")
    A(f"s_cbranch_scc1 {L('compute')}")
    sMH = 47
    A(f"""
    s_lshl_b32 s3, s{sRT128}, 2
    s_add_u32 s3, s3, s{sNT}
    s_mul_i32 s3, s3, 40960
    s_add_u32 s3, s3, {WS_H}
    v_add_u32 v5, s3, v{vL16}
    s_lshl_b32 s{sMH}, s{sNT}, 11
    s_barrier
    """)
    def issueH(c):
        for ksl in range(2):
            for t in range(2):
                A(f"s_add_u32 m0, s{sMH}, {(c%4)*SLOT4 + ksl*8192 + t*1024}")
                A(f"s_add_u32 s3, s48, {t*20480 + ksl*1024}")
                A(f"buffer_load_dwordx4 v5, {R(SWS)}, s3 offen {LDF} lds")
        A(f"""
        s_add_u32 s48, s48, 2048
        s_cmp_eq_u32 s48, 20480
        s_cmov_b32 s48, 0
        """)
    H0 = int(os.environ.get("H0", "1"))
    q = []
    for c in range(H0): issueH(c); q += [c]*4
    A(f"""
    s_mul_i32 s50, s{sNT}, 10240
    s_lshr_b32 s3, s{sNT}, 1
    s_mul_i32 s3, s3, {24*5120}
    s_and_b32 s14, s{sNT}, 1
    s_mul_i32 s14, s14, 10240
    s_add_u32 s3, s3, s14
    s_mul_i32 s14, s{sCT8}, 245760
    s_add_u32 s3, s3, s14
    s_add_u32 s3, s3, {WS_WD}
    v_add_u32 v6, s3, v{vL16}
    """)
    for c in range(11):
        if c < 10:
            n = len(q) - 1 - max(k for k, e in enumerate(q) if e == c)
            A(f"s_waitcnt vmcnt({n})")
        A("s_barrier")
        if c == 0:
            for cc in range(H0, 4): issueH(cc); q += [cc]*4
        if 1 <= c <= 6:
            issueH(c+3); issueW4(A, c+3); q += [c+3]*10
        if c >= 7:
            issueD(A, c - 7); q += [-1]*10
        if c < 10 and "nowr" not in OPT:
            k = 2*c
            A(f"s_mov_b32 s3, {(4 + k//10)*20480 + (k%10)*1024}")
            for kk in range(2):
                A(f"buffer_load_dwordx4 {v(WR+4*(k+kk),4)}, v6, {R(SWS)}, s3 offen offset:{kk*1024} {LDF}")
            q += [-1]*2
    A("s_barrier")
    A(f"s_branch {L('done')}")
    A.label(L('compute'))
    sWR, sWC = 45, 46
    vHB, vHC, vWBs, vWC_ = 4, 5, 6, 7
    HF = 16; WA = 48; WB = 60; ACC = 96; STR = 192
    A(f"""
    s_lshr_b32 s{sWR}, s{sW}, 1
    s_and_b32 s{sWC}, s{sW}, 1
    s_lshl_b32 s3, s{sWR}, 12
    v_add_u32 v{vHB}, s3, v{vL16}
    s_mul_i32 s3, s{sWC}, 3072
    s_add_u32 s3, s3, 16384
    v_add_u32 v{vWBs}, s3, v{vL16}
    v_lshrrev_b32 v10, 4, v0
    v_and_b32 v11, 15, v0
    s_lshl_b32 s15, s{sRT128}, 1
    s_add_u32 s15, s15, s{sWR}
    s_lshl_b32 s15, s15, 12
    s_add_u32 s15, s15, {WS_ST}
    v_lshlrev_b32 v12, 8, v10
    v_lshl_add_u32 v12, v11, 3, v12
    s_mov_b32 s47, s15
    s_cmp_lg_u32 s{sW}, 0
    s_cbranch_scc1 {L('nopoll')}
    s_lshl_b32 s15, s{sRT128}, 4
    """)
    waitfl(A, 1, 15, 16, 200)
    A.label(L('nopoll'))
    A("s_barrier")
    A.st("s3")
    for nt in range(4):
        for u in range(2):
            A(f"buffer_load_dwordx2 {v(STR+4*nt+2*u,2)}, v12, {R(SWS)}, s47 offen offset:{nt*1024 + u*128} {LDF}")
    def setaddr(c):
        A(f"v_add_u32 v{vHC}, {(c%4)*SLOT4}, v{vHB}")
        A(f"v_add_u32 v{vWC_}, {(c%4)*SLOT4}, v{vWBs}")
    def rdH(ksl, f): return [f"ds_read_b128 {v(HF+16*f+4*nt,4)}, v{vHC} offset:{ksl*8192 + nt*1024}" for nt in range(4)]
    def rdW(ksl, m): return [f"ds_read_b128 {v((WB if m else WA)+4*mt,4)}, v{vWC_} offset:{ksl*12288 + m*6144 + mt*1024}" for mt in range(3)]
    def mf(m, f, first, r):
        b = WB if m else WA
        k = 0
        for mt in range(3):
            for nt in range(4):
                acc = v(ACC + 48*m + 16*mt + 4*nt, 4)
                A(f"v_mfma_f32_16x16x32_bf16 {acc}, {v(b+4*mt,4)}, {v(HF+16*f+4*nt,4)}, {'0' if first else acc}")
                if k < len(r): A(r[k])
                k += 1
    setaddr(0)
    A("s_barrier")
    A.st("p4b0")
    for x in rdH(0, 0) + rdW(0, 0): A(x)
    for c in range(10):
        A("s_waitcnt lgkmcnt(0)")
        mf(0, 0, c == 0, rdW(0, 1) + rdH(1, 1))
        A("s_waitcnt lgkmcnt(4)")
        mf(1, 0, c == 0, rdW(1, 0))
        A("s_waitcnt lgkmcnt(0)")
        mf(0, 1, False, rdW(1, 1))
        A("s_waitcnt lgkmcnt(0)")
        if c < 9: setaddr(c+1)
        A("s_barrier")
        mf(1, 1, False, (rdW(0, 0) + rdH(0, 0)) if c < 9 else [])
    A.st("p4end")
    A("s_waitcnt vmcnt(0)")
    MN = 16
    for nt in range(4):
        A(f"v_add_f32 v{STR+4*nt}, v{STR+4*nt}, v{STR+4*nt+2}")
        A(f"v_add_f32 v{STR+4*nt+1}, v{STR+4*nt+1}, v{STR+4*nt+3}")
    for sw in ("v_permlane32_swap_b32", "v_permlane16_swap_b32"):
        for nt in range(4):
            A(f"v_mov_b32 v{STR+4*nt+2}, v{STR+4*nt}")
            A(f"v_mov_b32 v{STR+4*nt+3}, v{STR+4*nt+1}")
        A("s_nop 0")
        for nt in range(4):
            A(f"{sw} v{STR+4*nt+2}, v{STR+4*nt}")
            A(f"{sw} v{STR+4*nt+3}, v{STR+4*nt+1}")
        for nt in range(4):
            A(f"v_add_f32 v{STR+4*nt}, v{STR+4*nt}, v{STR+4*nt+2}")
            A(f"v_add_f32 v{STR+4*nt+1}, v{STR+4*nt+1}, v{STR+4*nt+3}")
    for nt in range(4):
        b = STR + 4*nt
        A(f"""
        v_mul_f32 v{b}, {hex(f32bits(1.0/640))}, v{b}
        v_mul_f32 v{b+1}, {hex(f32bits(1.0/640))}, v{b+1}
        v_fma_f32 v{b+1}, -v{b}, v{b}, v{b+1}
        v_max_f32 v{b+1}, 0, v{b+1}
        v_add_f32 v{b+1}, {hex(f32bits(1e-5))}, v{b+1}
        v_rcp_f32 v{b+1}, v{b+1}
        """)
    A(f"""
    s_lshl_b32 s3, s{sRT128}, 3
    s_lshl_b32 s14, s{sWR}, 2
    s_add_u32 s3, s3, s14
    s_mul_i32 s3, s3, 49152
    s_mul_i32 s14, s{sCT16}, 3072
    s_add_u32 s3, s3, s14
    s_mul_i32 s14, s{sWC}, 1536
    s_add_u32 s3, s3, s14
    s_add_u32 s3, s3, {WS_G}
    s_add_u32 s14, s3, {2*49152}
    v_and_b32 v12, 1, v10
    v_mul_u32_u24 v12, 49152, v12
    v_lshrrev_b32 v13, 1, v10
    v_lshl_add_u32 v12, v13, 8, v12
    v_lshl_add_u32 v12, v11, 4, v12
    """)
    for mt in range(3):
        for p in range(2):
            for q in range(2):
                nt = 2*p + q
                g = ACC + 16*mt + 4*nt; u = g + 48
                for j in (0, 2):
                    A(f"v_pk_fma_f32 {v(g+j,2)}, {v(STR+4*nt,2)}, {v(CS+4*mt+j,2)}, {v(g+j,2)} op_sel_hi:[0,1,1] neg_lo:[1,0,0] neg_hi:[1,0,0]")
                    A(f"v_pk_fma_f32 {v(u+j,2)}, {v(STR+4*nt,2)}, {v(CS+12+4*mt+j,2)}, {v(u+j,2)} op_sel_hi:[0,1,1] neg_lo:[1,0,0] neg_hi:[1,0,0]")
                for j in range(4):
                    A(f"v_max_f32 v{g+j}, 0, v{g+j}")
                for j in (0, 2):
                    A(f"v_pk_mul_f32 {v(u+j,2)}, {v(STR+4*nt,2)}, {v(u+j,2)} op_sel:[1,0] op_sel_hi:[1,1]")
                for j in (0, 2):
                    A(f"v_pk_mul_f32 {v(u+j,2)}, {v(g+j,2)}, {v(u+j,2)}")
            g0 = ACC + 16*mt + 8*p; u0 = g0 + 48
            for k in range(4): A(f"v_cvt_pk_bf16_f32 v{g0+k}, v{u0+2*k}, v{u0+2*k+1}")
            A("s_nop 0")
            A(f"v_permlane16_swap_b32 v{g0}, v{g0+2}")
            A(f"v_permlane16_swap_b32 v{g0+1}, v{g0+3}")
            A(f"buffer_store_dwordx4 {v(g0,4)}, v12, {R(SWS)}, s{14 if p else 3} offen offset:{mt*512} {STF}")
    A.st("p4st")
    A("s_waitcnt vmcnt(0)")
    A("s_barrier")
    A.st("p4drain")
    A(f"""
    s_cmp_lg_u32 s{sW}, 0
    s_cbranch_scc1 {L('done')}
    """)
    A(f"s_lshl_b32 s15, s{sRT128}, 4")
    A(f"s_add_u32 s15, s15, s{sCT16}")
    signal(A, 2, 15, 200)
    A.label(L('done'))

def gen_p5(A):
    L = lambda x: f"L5_{x}"
    vL16 = 2
    vWB, vWC = 4, 5
    LA = int(os.environ.get("LA", "6"))
    NG = LA + 1
    GF = 32
    WF = GF + 8*NG
    ACC = WF + 40
    assert ACC + 40 <= XR
    sG0, sG1, sKQ = 46, 47, 48
    srd(A, SA, pOUT, X_BYTES)
    PITCH = 336
    A(f"""
    s_lshl_b32 s3, s{sW}, 6
    v_add_u32 v22, s3, v0
    """)
    def item(vi, vl, vg):
        A(f"""
        v_mul_u32_u24 v23, 6554, v{vi}
        v_lshrrev_b32 v23, 16, v23
        v_mul_u32_u24 v24, 10, v23
        v_sub_u32 v24, v{vi}, v24
        v_mul_u32_u24 v{vl}, {PITCH}, v23
        v_lshl_add_u32 v{vl}, v24, 5, v{vl}
        v_mul_u32_u24 v{vg}, 1280, v23
        v_lshl_add_u32 v{vg}, v24, 4, v{vg}
        """)
    item(22, 25, 26)
    A(f"""
    s_mul_i32 s51, s{sRT64}, {64*1280}
    s_mul_i32 s3, s{sCT8}, 160
    s_add_u32 s51, s51, s3
    s_cmp_eq_u32 s{sKH}, 0
    s_cbranch_scc1 {L('compute')}
    v_add_u32 v22, 256, v22
    """)
    item(22, 27, 28)
    A("""
    s_waitcnt vmcnt(0)
    s_barrier
    """)
    A.st("s4")
    if "nowr" in OPT:
        A("s_barrier")
        issueD(A, 4)
        A("s_barrier")
        issueD(A, 5)
        A("""
        s_waitcnt vmcnt(10)
        s_barrier
        s_waitcnt vmcnt(0)
        s_barrier
        """)
    else:
        A(f"s_add_u32 s3, s50, 81920")
        A(f"v_add_u32 v7, s3, v{vL16}")
        for j in range(2):
            A("s_barrier")
            for k in range(10): A(f"ds_write_b128 v7, {v(WR+40*j+4*k,4)} offset:{j*40960 + k*1024}")
        A("""
        s_waitcnt lgkmcnt(0)
        s_barrier
        """)
    A(f"s_branch {L('red')}")
    A.label(L('compute'))
    A(f"""
    s_and_b32 s{sKQ}, s{sW}, 1
    s_lshl_b32 s50, s{sRT64}, 2
    s_add_u32 s{sG0}, s50, s{sNT}
    s_xor_b32 s{sG1}, s{sG0}, 1
    s_mul_i32 s3, s{sKQ}, 24576
    s_add_u32 s3, s3, {WS_G}
    s_mul_i32 s{sG0}, s{sG0}, 49152
    s_mul_i32 s{sG1}, s{sG1}, 49152
    s_add_u32 s{sG0}, s{sG0}, s3
    s_add_u32 s{sG1}, s{sG1}, s3
    s_mul_i32 s3, s{sKQ}, 20480
    v_add_u32 v{vWB}, s3, v{vL16}
    v_add_u32 v{vWC}, 81920, v{vWB}
    v_and_b32 v20, 15, v0
    v_lshrrev_b32 v21, 4, v0
    s_lshl_b32 s3, s{sKQ}, 2
    s_add_u32 s3, s3, s{sNT}
    s_lshl_b32 s3, s3, 4
    v_add_u32 v20, s3, v20
    v_xor_b32 v19, 16, v20
    v_mul_u32_u24 v20, {PITCH}, v20
    v_lshl_add_u32 v20, v21, 4, v20
    v_mul_u32_u24 v19, {PITCH}, v19
    v_lshl_add_u32 v19, v21, 4, v19
    """)
    for mt in range(5):
        A(f"""
        v_lshlrev_b32 v{ACC+4*mt}, 16, v{XR+2*mt}
        v_and_b32 v{ACC+4*mt+1}, 0xffff0000, v{XR+2*mt}
        v_lshlrev_b32 v{ACC+4*mt+2}, 16, v{XR+2*mt+1}
        v_and_b32 v{ACC+4*mt+3}, 0xffff0000, v{XR+2*mt+1}
        """)
    A(f"""
    s_cmp_lg_u32 s{sW}, 0
    s_cbranch_scc1 {L('nopoll')}
    s_lshr_b32 s15, s{sRT64}, 1
    s_lshl_b32 s15, s15, 4
    """)
    waitfl(A, 2, 15, 16, 200)
    A.label(L('nopoll'))
    A("s_barrier")
    A.st("s4")
    def gload(i):
        r = []
        if i % 4 == 0 and i:
            r += [f"s_add_u32 s{sG0}, s{sG0}, 4096", f"s_add_u32 s{sG1}, s{sG1}, 4096"]
        r += [f"buffer_load_dwordx4 {v(GF+8*(i%NG)+4*t,4)}, v{vL16}, {R(SWS)}, s{sG1 if t else sG0} offen offset:{(i%4)*1024} {LDF}" for t in range(2)]
        return r
    for i in range(LA):
        for x in gload(i): A(x)
    def wreads(i):
        st, ksl = i // 4, i % 4
        return [f"ds_read_b128 {v(WF+20*(i&1)+4*mt,4)}, v{vWB if st in (2, 3) else vWC} offset:{(st&1)*40960 + ksl*5120 + mt*1024}" for mt in range(5)]
    for x in wreads(0): A(x)
    for i in range(24):
        n = 2*(min(23, i + LA - 1) - i)
        A(f"s_waitcnt vmcnt({n}) lgkmcnt(0)")
        if i in ((3, 7, 15, 19) if 'nowr' in OPT else (3, 7, 15)): A("s_barrier")
        A.st(f"p5i{i}")
        fill = (wreads(i+1) if i < 23 else []) + (gload(i + LA) if i + LA < 24 else [])
        k = 0
        for t in range(2):
            for mt in range(5):
                acc = v(ACC+20*t+4*mt, 4)
                A(f"v_mfma_f32_16x16x32_bf16 {acc}, {v(WF+20*(i&1)+4*mt,4)}, {v(GF+8*(i%NG)+4*t,4)}, {'0' if (i == 0 and t == 1) else acc}")
                if k < len(fill): A(fill[k])
                k += 1
    A.st("p5end")
    A("s_nop 2")
    for mt in range(5): A(f"ds_write_b128 v20, {v(ACC+4*mt,4)} offset:{mt*64}")
    for mt in range(5): A(f"ds_write_b128 v19, {v(ACC+20+4*mt,4)} offset:{mt*64}")
    A("s_waitcnt lgkmcnt(0)")
    A.label(L('red'))
    A("s_barrier")
    A.st("p5red")
    def fin(vl, vg, b):
        for k in range(2):
            A(f"ds_read_b128 {v(b+8*k,4)}, v{vl} offset:{k*64*PITCH}")
            A(f"ds_read_b128 {v(b+8*k+4,4)}, v{vl} offset:{k*64*PITCH+16}")
        A("s_waitcnt lgkmcnt(0)")
        for j in range(0, 8, 2): A(f"v_pk_add_f32 {v(b+j,2)}, {v(b+j,2)}, {v(b+8+j,2)}")
        for j in range(4): A(f"v_cvt_pk_bf16_f32 v{b+j}, v{b+2*j}, v{b+2*j+1}")
        A(f"buffer_store_dwordx4 {v(b,4)}, v{vg}, {R(SA)}, s51 offen {os.environ.get('OUTF', '')}")
    fin(25, 26, 32)
    A(f"s_sub_u32 s3, s{sW}, 4")
    A(f"s_cmp_ge_u32 s3, 2")
    A(f"s_cbranch_scc1 {L('end')}")
    fin(27, 28, 64)
    A.label(L('end'))
```

```python
from asmlib import *
import math, struct, os
NAME = "sequential_preLN__softmax_full_mha__glu_gated_reglu__prompt"
S, D, H, DH, F = 2048, 640, 32, 20, 1536
WS_Q   = 0
WS_K   = WS_Q + 16*163840
WS_V   = WS_K + 16*163840
WS_O   = WS_V + 16*163840
WS_H   = WS_O + 128*20480
WS_ST  = WS_H + 128*20480
WS_CS  = WS_ST + 128*1024
WS_G   = WS_CS + 20*3072*4
WS_WO  = WS_G + 128*49152
WS_WGU = WS_WO + 8*102400
WS_WD  = WS_WGU + 16*245760
WS_RS  = WS_WD + 8*245760
WS_CNT = WS_RS + 2048*8
NCNT = 256
WS_FL  = WS_CNT + NCNT*256
WS_END = WS_FL + 3*256*128
C1, F1, C2, C3, C4, CP, FP = 0, 8, 72, 88, 120, 136, 144
A2, A3, A4 = 208, 224, 240
TREE = set(os.environ.get('TREE', 'L').split(','))
X_BYTES = S*D*2; WQKV_BYTES = D*3*D*2; WO_BYTES = D*D*2; WG_BYTES = D*F*2; WD_BYTES = F*D*2
def f32bits(x): return struct.unpack("<I", struct.pack("<f", x))[0]
QSCALE = DH**-0.5 * math.log2(math.e)
OPT = set(os.environ.get("OPT", "nowr").split(","))
STF = "sc1"
LDF = "sc1"
SENT = set(os.environ.get("SENT", "4").split(","))
SPIN = 400000

pX, pWQKV, pWO, pWG, pWU, pWD, pOUT, pDBG, pWS = 4, 6, 8, 28, 30, 32, 34, 36, 38
SA, SB_, SWS = 16, 20, 24
sW = 42

def srd(A, sd, sp, nbytes):
    A(f"s_mov_b32 s{sd}, s{sp}")
    A(f"s_mov_b32 s{sd+1}, s{sp+1}")
    A(f"s_mov_b32 s{sd+2}, {nbytes}")
    A(f"s_mov_b32 s{sd+3}, 0x00020000")
def R(x): return f"s[{x}:{x+3}]"

_uid = [0]
def arrive(A, s_idx, vt):
    A(f"""
    s_lshl_b32 s3, s{s_idx}, 8
    s_add_u32 s3, s3, {WS_CNT}
    v_mov_b32 v{vt}, s3
    v_mov_b32 v{vt+1}, 1
    s_mov_b64 exec, 1
    buffer_atomic_add v{vt+1}, v{vt}, {R(SWS)}, 0 offen sc1
    s_mov_b64 exec, -1
    """)
def arrive_tree(A, s_idx, cbase, fbase, last, nrep, vt):
    _uid[0] += 1; u = _uid[0]
    A(f"""
    s_lshl_b32 s3, s{s_idx}, 8
    s_add_u32 s3, s3, {WS_CNT + cbase*256}
    v_mov_b32 v{vt}, s3
    v_mov_b32 v{vt+1}, 1
    s_mov_b64 exec, 1
    buffer_atomic_add v{vt+1}, v{vt}, {R(SWS)}, 0 offen sc0 sc1
    s_mov_b64 exec, -1
    s_sub_u32 s3, s3, {(cbase - fbase)*256}
    v_lshl_add_u32 v{vt}, v0, 12, s3
    s_waitcnt vmcnt(0)
    v_readfirstlane_b32 s3, v{vt+1}
    s_cmp_lg_u32 s3, {last}
    s_cbranch_scc1 Larr{u}
    v_mov_b32 v{vt+1}, 16
    s_mov_b64 exec, {(1 << nrep) - 1}
    buffer_store_dword v{vt+1}, v{vt}, {R(SWS)}, 0 offen sc1
    s_mov_b64 exec, -1
    """)
    A.label(f"Larr{u}")
def signal(A, k, s_idx, vt):
    A(f"""
    s_lshl_b32 s3, s{s_idx}, 7
    s_add_u32 s3, s3, {WS_FL + k*32768}
    v_mov_b32 v{vt}, s3
    v_mov_b32 v{vt+1}, 1
    s_mov_b64 exec, 1
    buffer_store_dword v{vt+1}, v{vt}, {R(SWS)}, 0 offen sc1
    s_mov_b64 exec, -1
    """)
def waitfl(A, k, s_idx, n, vt):
    _uid[0] += 1; u = _uid[0]
    A(f"""
    s_lshl_b32 s3, s{s_idx}, 7
    s_add_u32 s3, s3, {WS_FL + k*32768}
    v_lshl_add_u32 v{vt}, v0, 7, s3
    s_mov_b32 s14, {SPIN}
    s_mov_b32 exec_lo, {hex((1 << n) - 1)}
    s_mov_b32 exec_hi, 0
    """)
    A.label(f"Lpoll{u}")
    A(f"""
    buffer_load_dword v{vt+1}, v{vt}, {R(SWS)}, 0 offen sc1
    s_waitcnt vmcnt(0)
    v_cmp_eq_u32 vcc, 1, v{vt+1}
    s_sub_u32 s14, s14, 1
    s_cmp_eq_u32 s14, 0
    s_cbranch_scc1 Lpolld{u}
    s_cmp_eq_u64 vcc, exec
    s_cbranch_scc0 Lpoll{u}
    """)
    A.label(f"Lpolld{u}")
    A("s_mov_b64 exec, -1")
def poll(A, s_idx, n, target, vt):
    _uid[0] += 1; u = _uid[0]
    A(f"""
    s_lshl_b32 s3, s{s_idx}, 8
    s_add_u32 s3, s3, {WS_CNT}
    v_lshl_add_u32 v{vt}, v0, 8, s3
    s_mov_b32 s14, {SPIN}
    s_mov_b64 exec, {(1 << n) - 1}
    """)
    A.label(f"Lpoll{u}")
    A(f"""
    buffer_load_dword v{vt+1}, v{vt}, {R(SWS)}, 0 offen sc1
    s_waitcnt vmcnt(0)
    v_cmp_le_u32 vcc, {target}, v{vt+1}
    s_sub_u32 s14, s14, 1
    s_cmp_eq_u32 s14, 0
    s_cbranch_scc1 Lpolld{u}
    s_cmp_eq_u64 vcc, exec
    s_cbranch_scc0 Lpoll{u}
    """)
    A.label(f"Lpolld{u}")
    A("s_mov_b64 exec, -1")

def prep_params(A, L, s_n, src, regs):
    g = regs
    sU = g['sU']
    A(f"""
    s_cmp_lt_u32 s{s_n}, 480
    s_cbranch_scc1 {L('gu')}
    s_sub_u32 s3, s{s_n}, 480
    s_mul_i32 s14, s3, 13108
    s_lshr_b32 s14, s14, 16
    s_mul_i32 s15, s14, 5
    s_sub_u32 s{sU}, s3, s15
    """)
    if src: A(f"s_mov_b32 s{g['sPP']}, 1280")
    else:
        A(f"s_mov_b32 s{g['sMG']}, 13108")
        A(f"s_mov_b32 s{g['sDV']}, 5")
        A(f"s_mov_b32 s{g['sPC']}, 0x40000000")
    A(f"""
    s_cmp_lt_u32 s14, 48
    s_cbranch_scc0 {L('wo')}
    """)
    def pat(J, P1, P2, base, add, pitch):
        A(f"""
        s_mov_b32 s{g['sJ']}, {J*pitch}
        s_mov_b32 s{g['sP1']}, {P1*pitch}
        s_mov_b32 s{g['sP2']}, {P2*pitch}
        s_mul_i32 s{g['sB']}, s14, {base*pitch}
        """)
        if add: A(f"s_add_u32 s{g['sB']}, s{g['sB']}, {add*pitch}")
    if src:
        srd(A, g['srd'], pWD, WD_BYTES); pat(4, 8, 16, 32, 0, 1280)
    else:
        A(f"""
        s_mov_b32 s{g['sCS_']}, 245760
        s_mul_i32 s{g['sDB']}, s14, 5120
        s_add_u32 s{g['sDB']}, s{g['sDB']}, {WS_WD}
        """)
    A(f"s_branch {L('done')}")
    A.label(L('wo'))
    if src: srd(A, g['srd'], pWO, WO_BYTES)
    A(f"""
    s_sub_u32 s14, s14, 48
    s_cmp_lt_u32 s14, 16
    s_cbranch_scc0 {L('wob')}
    """)
    if src:
        pat(8, 4, 20, 40, 0, 1280)
        A(f"s_branch {L('done')}")
    else:
        A(f"""
        s_lshr_b32 s3, s14, 3
        s_and_b32 s14, s14, 7
        s_branch {L('woc')}
        """)
    A.label(L('wob'))
    A("s_sub_u32 s14, s14, 16")
    if src:
        pat(20, 40, 80, 160, 16, 1280)
        A(f"""
        s_cmp_ge_u32 s14, 4
        s_cmov_b32 s{g['srd']+2}, 0
        s_branch {L('done')}
        """)
    else:
        A(f"""
        s_lshr_b32 s3, s14, 1
        s_and_b32 s14, s14, 1
        s_add_u32 s14, s14, 8
        """)
        A.label(L('woc'))
        d = g['sDB']
        A(f"""
        s_mov_b32 s{g['sCS_']}, 102400
        s_mul_i32 s{d}, s3, 7
        s_add_u32 s{d}, s{d}, 6
        s_mul_i32 s15, s3, 3
        s_sub_u32 s15, s15, 7
        s_cmp_ge_u32 s14, 7
        s_cselect_b32 s{d}, s15, s{d}
        s_add_u32 s{d}, s{d}, s14
        s_mul_i32 s{d}, s{d}, 5120
        s_add_u32 s{d}, s{d}, {WS_WO}
        s_cmp_ge_u32 s3, 2
        s_cmov_b32 s{d}, 0x40000000
        s_branch {L('done')}
        """)
    A.label(L('gu'))
    A(f"s_cmp_ge_u32 s{s_n}, 240")
    if src:
        r = g['srd']
        A(f"""
        s_cselect_b32 s{r}, s{pWU}, s{pWG}
        s_cselect_b32 s{r+1}, s{pWU+1}, s{pWG+1}
        s_mov_b32 s{r+2}, {WG_BYTES}
        s_mov_b32 s{r+3}, 0x00020000
        """)
    else:
        A(f"s_cselect_b32 s{g['sDB']}, 6144, 0")
    A(f"""
    s_cselect_b32 s14, 240, 0
    s_sub_u32 s3, s{s_n}, s14
    s_mul_i32 s14, s3, 5462
    s_lshr_b32 s14, s14, 16
    s_mul_i32 s15, s14, 12
    s_sub_u32 s{sU}, s3, s15
    """)
    if src:
        A(f"s_mov_b32 s{g['sPP']}, 3072")
        pat(4, 8, 16, 32, 0, 3072)
    else:
        d = g['sDB']
        A(f"""
        s_mov_b32 s{g['sMG']}, 10923
        s_mov_b32 s{g['sDV']}, 6
        s_mov_b32 s{g['sCS_']}, 245760
        s_mul_i32 s14, s14, 12288
        s_add_u32 s{d}, s{d}, s14
        s_lshl_b32 s{g['sPC']}, s{sU}, 9
        s_add_u32 s{g['sPC']}, s{g['sPC']}, s{d}
        s_add_u32 s{g['sPC']}, s{g['sPC']}, {WS_CS}
        s_add_u32 s{d}, s{d}, {WS_WGU}
        """)
    A.label(L('done'))
```

```python
from mcommon import *
import re

def gen_entry(A, name):
    A.raw(f".globl {name}")
    A.raw(".p2align 8")
    A.raw(f".type {name},@function")
    A.label(name)
    A.label("L_codestart")
    A("s_cmp_ge_u32 s2, 256")
    A("s_cbranch_scc1 L_exit")
    A.st("start")
    A(f"""
    s_load_dwordx4 s[4:7], s[0:1], 0
    s_load_dwordx8 s[32:39], s[0:1], 48
    s_load_dwordx2 s[8:9], s[0:1], 16
    s_load_dwordx4 s[28:31], s[0:1], 32
    v_lshrrev_b32 v1, 6, v0
    v_and_b32 v0, 63, v0
    v_readfirstlane_b32 s{sW}, v1
    """)

def gen_p1(A):
    L = lambda x: f"L1_{x}"
    PD = int(os.environ.get("PD1", "2"))
    sRT, sCT = 40, 41
    A(f"""
    s_and_b32 s3, s2, 3
    s_lshl_b32 s3, s3, 2
    s_bfe_u32 s14, s2, 0x20003
    s_add_u32 s{sRT}, s3, s14
    s_bfe_u32 s3, s2, 0x10002
    s_lshl_b32 s3, s3, 3
    s_lshr_b32 s14, s2, 5
    s_add_u32 s{sCT}, s3, s14
    """)
    SX, SWQ = SA, SB_
    STAT = 0
    NS = int(os.environ.get('NS1', '4'))
    PREP = 131072
    A(f"s_cmp_eq_u32 s{sCT}, 15")
    A(f"s_cbranch_scc1 {L('spare')}")
    A(f"s_cmp_lt_u32 s{sW}, 4")
    A(f"s_cbranch_scc1 {L('compute')}")
    sLW = 43
    vX0, vX1, vWa = 2, 3, 4
    A(f"""
    s_sub_u32 s{sLW}, s{sW}, 4
    v_lshrrev_b32 v5, 3, v0
    s_lshl_b32 s3, s{sRT}, 2
    s_add_u32 s3, s3, s{sLW}
    s_lshl_b32 s3, s3, 5
    v_add_u32 v5, s3, v5
    v_mul_u32_u24 v5, 1280, v5
    v_and_b32 v6, 7, v0
    v_lshrrev_b32 v7, 4, v0
    v_xor_b32 v6, v6, v7
    v_lshlrev_b32 v6, 4, v6
    v_add_u32 v{vX0}, v5, v6
    v_xor_b32 v6, 64, v6
    v_add_u32 v{vX1}, v5, v6
    s_lshl_b32 s3, s{sLW}, 4
    v_add_u32 v5, s3, v7
    v_mul_u32_u24 v5, 3840, v5
    v_bfe_u32 v6, v0, 2, 2
    v_xor_b32 v6, v6, v7
    v_lshlrev_b32 v6, 6, v6
    v_and_b32 v8, 3, v0
    v_lshlrev_b32 v8, 4, v8
    v_add3_u32 v5, v5, v6, v8
    s_lshl_b32 s3, s{sCT}, 8
    v_add_u32 v{vWa}, s3, v5
    s_lshl_b32 s44, s{sLW}, 12
    """)
    sXO, sWO = 47, 48
    A(f"""
    s_and_b32 s3, s{sCT}, 7
    s_mul_i32 s3, s3, 10
    s_lshr_b32 s3, s3, 3
    s_and_b32 s14, s{sRT}, 3
    s_mul_i32 s14, s14, 10
    s_lshr_b32 s14, s14, 2
    s_add_u32 s3, s3, s14
    s_cmp_ge_u32 s3, 10
    s_cselect_b32 s14, 10, 0
    s_sub_u32 s3, s3, s14
    """)
    if "norot1" in OPT: A("s_mov_b32 s3, 0")
    A(f"""
    s_lshl_b32 s{sXO}, s3, 7
    s_mul_i32 s{sWO}, s3, {64*3840}
    """)
    A("s_waitcnt lgkmcnt(0)")
    srd(A, SX, pX, X_BYTES); srd(A, SWQ, pWQKV, WQKV_BYTES); srd(A, SWS, pWS, WS_END)
    q = []
    def issX(c):
        st = (c % NS) * 32768
        for i in range(4):
            A(f"s_add_u32 m0, s44, {st + i*1024}")
            A(f"s_add_u32 s45, s{sXO}, {8*i*1280}")
            A(f"buffer_load_dwordx4 v{vX1 if i&1 else vX0}, {R(SX)}, s45 offen lds")
        A(f"""
        s_add_u32 s{sXO}, s{sXO}, 128
        s_cmp_eq_u32 s{sXO}, 1280
        s_cmov_b32 s{sXO}, 0
        """)
        q.extend([c]*4)
    def issW(c):
        st = (c % NS) * 32768
        for i in range(4):
            A(f"s_add_u32 m0, s44, {st + 16384 + i*1024}")
            A(f"s_add_u32 s45, s{sWO}, {4*i*3840}")
            A(f"buffer_load_dwordx4 v{vWa}, {R(SWQ)}, s45 offen lds")
        A(f"""
        s_add_u32 s{sWO}, s{sWO}, {64*3840}
        s_cmp_eq_u32 s{sWO}, {640*3840}
        s_cmov_b32 s{sWO}, 0
        """)
        q.extend([c]*4)
    plan = os.environ.get("PLAN1", "X0W0X1W1").split("|")
    done = set()
    def run(ops):
        for m in re.findall(r"[XW]\d", ops):
            (issX if m[0] == "X" else issW)(int(m[1])); done.add(m)
    def iss(c):
        run("".join(m for m in (f"X{c}", f"W{c}") if m not in done))
    def after(*tags):
        return len(q) - 1 - max(k for k, e in enumerate(q) if e in tags)
    run(plan[0])
    A.st("p1iss")
    vAW = 22
    A(f"""
    v_lshrrev_b32 v6, 5, v0
    v_bfe_u32 v5, v0, 2, 2
    v_lshl_add_u32 v7, v6, 3, v5
    v_lshlrev_b32 v7, 8, v7
    v_xor_b32 v5, s{sLW}, v5
    v_lshlrev_b32 v5, 6, v5
    v_bfe_u32 v8, v0, 4, 1
    v_lshlrev_b32 v8, 5, v8
    v_add3_u32 v7, v7, v5, v8
    v_and_b32 v8, 3, v0
    v_lshlrev_b32 v8, 3, v8
    s_mov_b32 s3, 16384
    v_add3_u32 v{vAW}, v7, v8, s3
    v_add_u32 v{vAW+1}, 65536, v{vAW}
    s_mov_b32 s46, 0x3f803f80
    v_mov_b32 v28, 0
    v_mov_b32 v29, 0
    s_mov_b32 s49, 0xffff0000
    """)
    vPA, vL16, vFL, vRA, vST_ = 10, 11, 12, 13, 9
    A(f"""
    s_lshl_b32 s3, s{sRT}, 2
    s_add_u32 s3, s3, 4
    v_mov_b32 v{vFL}, s3
    v_and_b32 v5, 31, v0
    s_lshl_b32 s3, s{sRT}, 2
    s_add_u32 s3, s3, s{sLW}
    s_lshl_b32 s3, s3, 8
    s_add_u32 s3, s3, {WS_RS}
    v_lshl_add_u32 v{vRA}, v5, 3, s3
    s_lshl_b32 s3, s{sLW}, 7
    s_add_u32 s3, s3, {STAT}
    v_lshl_add_u32 v{vST_}, v5, 2, s3
    """)
    vCs = 28
    vD = 32
    CF = int(os.environ.get("CF", "6")); CK = int(os.environ.get("CK", "8"))
    for c in range(10):
        A(f"s_waitcnt vmcnt({after(c)})")
        A("s_barrier")
        A.st(f"p1b{c}")
        if c + 1 < len(plan): run(plan[c+1])
        else:
            for cc in range(min(9, c + PD) + 1): iss(cc)
        if c == CF:
            A(f"global_load_dword v14, v{vFL}, s[{pDBG}:{pDBG+1}] sc1"); q.append('fl')
        st = c % NS
        o = (st & 1) * 32768; k = st >> 1
        for s_ in range(4):
            for u in range(2):
                A(f"ds_read_b64_tr_b16 {v(vD+4*s_+2*u,2)}, v{vAW+k} offset:{o + s_*4096 + u*1024}")
        for hh in range(2):
            A(f"s_waitcnt lgkmcnt({4 - 4*hh})")
            for j in range(8*hh, 8*hh + 8):
                if "csvalu" not in OPT and "nocs" not in OPT: A(f"v_dot2_f32_bf16 v{vCs}, v{vD+j}, s46, v{vCs}")
                elif "nocs" in OPT: pass
                else:
                    A(f"v_lshlrev_b32 v27, 16, v{vD+j}")
                    A(f"v_and_b32 v{vD+j}, s49, v{vD+j}")
                    A(f"v_add_f32 v{vCs}, v{vCs}, v27")
                    A(f"v_add_f32 v29, v29, v{vD+j}")
        if c == CK:
            A(f"""
            s_waitcnt vmcnt({after('fl')})
            s_mov_b32 s14, {SPIN}
            """)
            A.label(L('fl'))
            A(f"""
            v_readfirstlane_b32 s3, v14
            s_cmp_lg_u32 s3, 0
            s_cbranch_scc1 {L('fl2')}
            global_load_dword v14, v{vFL}, s[{pDBG}:{pDBG+1}] sc1
            s_waitcnt vmcnt(0)
            s_sub_u32 s14, s14, 1
            s_cmp_lg_u32 s14, 0
            s_cbranch_scc1 {L('fl')}
            """)
            A.label(L('fl2'))
            A(f"buffer_load_dwordx2 v[16:17], v{vRA}, {R(SWS)}, 0 offen {LDF}"); q.append('rs')
    A(f"""
    s_nop 2
    v_add_f32 v{vCs}, v{vCs}, v29
    v_mov_b32 v31, v{vCs}
    s_nop 1
    v_permlane32_swap_b32 v31, v{vCs}
    v_add_f32 v{vCs}, v31, v{vCs}
    ds_write_b32 v{vST_}, v{vCs} offset:1024
    s_waitcnt vmcnt({after('rs')})
    ds_write_b32 v{vST_}, v16
    ds_write_b32 v{vST_}, v17 offset:512
    s_waitcnt lgkmcnt(0)
    s_barrier
    """)
    A(f"s_branch {L('done')}")
    A.label(L('compute'))
    sWR, sWC = 43, 44
    vAX = 2; vAW = 14; FR = 32; ACC = 64
    A(f"""
    s_lshr_b32 s{sWR}, s{sW}, 1
    s_and_b32 s{sWC}, s{sW}, 1
    v_and_b32 v20, 31, v0
    v_lshrrev_b32 v21, 5, v0
    v_bfe_u32 v22, v0, 1, 3
    v_xor_b32 v22, v22, v21
    v_lshlrev_b32 v22, 4, v22
    v_lshlrev_b32 v23, 7, v20
    s_lshl_b32 s3, s{sWR}, 13
    v_add3_u32 v{vAX}, v23, v22, s3
    """)
    if "nocodepf" not in OPT:
        A(f"""
        s_getpc_b64 s[46:47]
        """)
        A.label("L_pcbase")
        A(f"""
        s_sub_u32 s46, s46, L_pcbase-L_codestart
        s_subb_u32 s47, s47, 0
        s_lshr_b32 s3, s2, 3
        s_lshl_b32 s3, s3, 2
        s_add_u32 s3, s3, s{sW}
        s_lshl_b32 s3, s3, 9
        v_and_b32 v128, 3, v0
        v_lshl_add_u32 v128, v128, 7, s3
        v_min_u32 v129, L_codeend-L_codestart-4, v128
        global_load_dword v254, v129, s[46:47]
        """)
    for s_ in range(1, 4): A(f"v_xor_b32 v{vAX+s_}, {s_*32}, v{vAX}")
    for s_ in range(4): A(f"v_add_u32 v{vAX+4+s_}, 65536, v{vAX+s_}")
    A(f"""
    v_bfe_u32 v22, v0, 2, 2
    v_lshl_add_u32 v23, v21, 3, v22
    v_lshlrev_b32 v23, 8, v23
    s_lshl_b32 s3, s{sWC}, 1
    v_xor_b32 v22, s3, v22
    v_lshlrev_b32 v22, 6, v22
    v_bfe_u32 v24, v0, 4, 1
    v_lshlrev_b32 v24, 5, v24
    v_add3_u32 v23, v23, v22, v24
    v_and_b32 v24, 3, v0
    v_lshlrev_b32 v24, 3, v24
    s_mov_b32 s3, 16384
    v_add3_u32 v{vAW}, v23, v24, s3
    v_xor_b32 v{vAW+1}, 64, v{vAW}
    """)
    for t in range(2): A(f"v_add_u32 v{vAW+2+t}, 65536, v{vAW+t}")
    if "touch1" in OPT:
        A(f"""
        s_mul_i32 s3, s{sRT}, 15
        s_add_u32 s3, s3, s{sCT}
        s_lshl_b32 s3, s3, 1
        s_add_u32 s3, s3, s{sWC}
        s_cmp_eq_u32 s{sWR}, 0
        s_cselect_b32 s14, 43, 40
        s_mul_i32 s3, s3, s14
        s_sub_u32 s14, s14, 1
        v_min_u32 v130, s14, v0
        v_add_u32 v130, s3, v130
        v_lshlrev_b32 v130, 7, v130
        s_cmp_eq_u32 s{sWR}, 0
        s_waitcnt lgkmcnt(0)
        s_cselect_b32 s{SA}, s{pX}, s{pWQKV}
        s_cselect_b32 s{SA+1}, s{pX+1}, s{pWQKV+1}
        s_mov_b32 s{SA+2}, {WQKV_BYTES}
        s_cmov_b32 s{SA+2}, {X_BYTES}
        s_mov_b32 s{SA+3}, 0x00020000
        """)
        for k in range(int(os.environ.get("TDELAY", "0"))): A("s_nop 15")
        A(f"buffer_load_dword v253, v130, {R(SA)}, 0 offen")
    A("s_waitcnt lgkmcnt(0)")
    srd(A, SWS, pWS, WS_END)
    A(f"""
    s_lshl_b32 s3, s2, 3
    s_add_u32 s3, s3, s{sW}
    s_cmp_lg_u32 s3, 1
    s_cbranch_scc1 {L('nozero')}
    s_mov_b32 s3, {WS_CNT}
    v_lshl_add_u32 v131, v0, 8, s3
    v_mov_b32 v132, 0
    s_mov_b32 s3, 16384
    buffer_store_dword v132, v131, {R(SWS)}, 0 offen sc1
    buffer_store_dword v132, v131, {R(SWS)}, s3 offen sc1
    s_mov_b32 s3, 32768
    buffer_store_dword v132, v131, {R(SWS)}, s3 offen sc1
    s_mov_b32 s3, 49152
    buffer_store_dword v132, v131, {R(SWS)}, s3 offen sc1
    s_waitcnt vmcnt(0)
    v_mov_b32 v133, 1
    s_mov_b64 exec, 1
    global_store_dword v132, v133, s[{pDBG}:{pDBG+1}] sc1
    s_mov_b64 exec, -1
    """)
    A.label(L('nozero'))
    def reads(c, s_, f, part=None):
        st = c % NS; o = (st & 1) * 32768; k = st >> 1
        b = FR + 16*f
        l = [f"ds_read_b128 {v(b,4)}, v{vAX+4*k+s_} offset:{o}",
             f"ds_read_b64_tr_b16 {v(b+8,2)}, v{vAW+2*k} offset:{o + s_*4096}",
             f"ds_read_b64_tr_b16 {v(b+10,2)}, v{vAW+2*k} offset:{o + s_*4096 + 1024}",
             f"ds_read_b128 {v(b+4,4)}, v{vAX+4*k+s_} offset:{o + 4096}",
             f"ds_read_b64_tr_b16 {v(b+12,2)}, v{vAW+2*k+1} offset:{o + s_*4096}",
             f"ds_read_b64_tr_b16 {v(b+14,2)}, v{vAW+2*k+1} offset:{o + s_*4096 + 1024}"]
        return l
    def mfmas(f, first, isV):
        b = FR + 16*f
        l = []
        for (xs, ws) in ((0,0),(1,0),(0,1),(1,1)):
            acc = v(ACC + 16*(2*xs+ws), 16)
            X = v(b+4*xs, 4); W = v(b+8+4*ws, 4)
            cc = "0" if first else acc
            if "fake16" in OPT:
                b0 = ACC + 16*(2*xs+ws) + 8*f
                X2 = v(b+4*(1-xs), 4)
                l.append(f"v_mfma_f32_16x16x32_bf16 {v(b0,4)}, {W}, {X}, {v(b0,4)}\nv_mfma_f32_16x16x32_bf16 {v(b0+4,4)}, {X}, {W}, {v(b0+4,4)}")
                continue
            l.append(f"v_mfma_f32_32x32x16_bf16 {acc}, {X}, {W}, {cc}" if isV else f"v_mfma_f32_32x32x16_bf16 {acc}, {W}, {X}, {cc}")
        return l
    def weave(m, r, allin, pi=None):
        A(m[0])
        for x in r[0:3]: A(x)
        if not allin: A("s_waitcnt lgkmcnt(3)")
        A(m[1])
        for x in r[3:6]: A(x)
        if pi is not None: A(f"s_add_u32 m0, s50, {pi*1024}")
        A(m[2])
        if pi is not None: A(f"buffer_load_dwordx4 v{vPL}, {R(SA)}, {PSO[pi]} offen lds")
        A(m[3])
    def mainloop(isV):
        A("s_barrier")
        A.st("p1b0")
        for x in reads(0, 0, 0): A(x)
        for c in range(10):
            for s_ in range(3):
                A("s_waitcnt lgkmcnt(3)")
                pi = None
                weave(mfmas(s_ & 1, c == 0 and s_ == 0, isV), reads(c, s_+1, (s_+1) & 1), False, pi)
            A("s_waitcnt lgkmcnt(0)")
            if c < 9:
                A("s_barrier")
                A.st(f"p1b{c+1}")
                weave(mfmas(1, False, isV), reads(c+1, 0, 0), True)
            else:
                for x in mfmas(1, False, isV): A(x)
        A.st("p1end")
    A(f"s_cmp_ge_u32 s{sCT}, 10")
    A(f"s_cbranch_scc1 {L('vpath')}")
    mainloop(False)
    sSC = 46
    vST = 2
    A(f"""
    s_cmp_ge_u32 s{sCT}, 5
    s_cselect_b32 s{sSC}, 1.0, {hex(f32bits(QSCALE))}
    s_cselect_b32 s47, {WS_K - 5*32768}, {WS_Q}
    s_cselect_b64 vcc, -1, 0
    v_and_b32 v6, 19, v20
    v_bfe_u32 v7, v20, 2, 1
    v_lshl_or_b32 v6, v7, 3, v6
    v_bfe_u32 v7, v20, 3, 1
    v_lshl_or_b32 v6, v7, 2, v6
    v_cndmask_b32 v6, v20, v6, vcc
    v_lshlrev_b32 v6, 4, v6
    v_lshl_add_u32 v6, v21, 11, v6
    s_mul_i32 s3, s{sRT}, 163840
    s_add_u32 s47, s47, s3
    s_lshl_b32 s3, s{sCT}, 15
    s_add_u32 s47, s47, s3
    s_lshl_b32 s3, s{sWC}, 14
    s_add_u32 s47, s47, s3
    s_lshl_b32 s3, s{sWR}, 10
    s_add_u32 s47, s47, s3
    v_add_u32 v{vST}, s47, v6
    s_barrier
    """)
    A.st("p1stat")
    vMN, vRS = 14, 16
    CSR = 32
    A(f"""
    s_lshl_b32 s3, s{sWR}, 8
    s_add_u32 s3, s3, {STAT}
    v_lshl_add_u32 v18, v20, 2, s3
    ds_read_b32 v{vMN}, v18
    ds_read_b32 v{vMN+1}, v18 offset:128
    ds_read_b32 v{vRS}, v18 offset:512
    ds_read_b32 v{vRS+1}, v18 offset:640
    s_lshl_b32 s3, s{sWC}, 8
    s_add_u32 s3, s3, {STAT+1024}
    v_lshl_add_u32 v19, v21, 4, s3
    """)
    for ws in range(2):
        for i in range(4):
            A(f"ds_read_b128 {v(CSR+16*ws+4*i,4)}, v19 offset:{ws*128+i*32}")
    A("s_waitcnt lgkmcnt(8)")
    A(f"v_mul_f32 v{vRS}, s{sSC}, v{vRS}")
    A(f"v_mul_f32 v{vRS+1}, s{sSC}, v{vRS+1}")
    A("s_waitcnt lgkmcnt(0)")
    for ws in range(2):
        for xs in range(2):
            b = ACC + 16*(2*xs+ws)
            sel = f"op_sel:[{xs},0,0] op_sel_hi:[{xs},1,1]"
            for r in range(0, 16, 2): A(f"v_pk_fma_f32 {v(b+r,2)}, {v(vMN,2)}, {v(CSR+16*ws+r,2)}, {v(b+r,2)} {sel} neg_lo:[1,0,0] neg_hi:[1,0,0]")
            for r in range(0, 16, 2): A(f"v_pk_mul_f32 {v(b+r,2)}, {v(vRS,2)}, {v(b+r,2)} op_sel:[{xs},0] op_sel_hi:[{xs},1]")
            for r in range(8): A(f"v_cvt_pk_bf16_f32 v{b+r}, v{b+2*r}, v{b+2*r+1}")
            A(f"s_mov_b32 s3, {ws*8192 + xs*512}")
            A(f"s_mov_b32 s14, {ws*8192 + xs*512 + 4096}")
            for ip in range(2):
                A(f"v_permlane32_swap_b32 v{b+4*ip}, v{b+4*ip+2}")
                A(f"v_permlane32_swap_b32 v{b+4*ip+1}, v{b+4*ip+3}")
            for ip in range(2):
                A(f"buffer_store_dwordx4 {v(b+4*ip,4)}, v{vST}, {R(SWS)}, s{14 if ip else 3} offen {STF}")
    A(f"s_branch {L('done')}")
    A.label(L('vpath'))
    mainloop(True)
    vVA = 2
    A(f"""
    s_mul_i32 s3, s{sRT}, 163840
    s_mul_i32 s14, s{sWR}, 81920
    s_add_u32 s3, s3, s14
    s_lshl_b32 s14, s{sCT}, 11
    s_add_u32 s3, s3, s14
    s_lshl_b32 s14, s{sWC}, 10
    s_add_u32 s3, s3, s14
    s_add_u32 s3, s3, {WS_V - 10*2048}
    v_mul_u32_u24 v5, 10240, v21
    v_lshl_add_u32 v5, v20, 4, v5
    v_add_u32 v{vVA}, s3, v5
    s_barrier
    """)
    A.st("p1stat")
    vCSL = 4
    A(f"""
    s_lshl_b32 s3, s{sWC}, 8
    s_add_u32 s3, s3, {STAT+1024}
    v_lshl_add_u32 v18, v20, 2, s3
    ds_read_b32 v{vCSL}, v18
    ds_read_b32 v{vCSL+1}, v18 offset:128
    s_lshl_b32 s3, s{sWR}, 8
    s_add_u32 s3, s3, {STAT}
    v_lshl_add_u32 v19, v21, 4, s3
    """)
    for xs in range(2):
        for i in range(4):
            A(f"ds_read_b128 {v(128+32*xs+4*i,4)}, v19 offset:{xs*128+i*32}")
            A(f"ds_read_b128 {v(144+32*xs+4*i,4)}, v19 offset:{512+xs*128+i*32}")
    for xs in range(2):
        A(f"s_waitcnt lgkmcnt({8 if xs == 0 else 0})")
        for ws in range(2):
            b = ACC + 16*(2*xs+ws)
            for r in range(0, 16, 2): A(f"v_pk_fma_f32 {v(b+r,2)}, {v(vCSL,2)}, {v(128+32*xs+r,2)}, {v(b+r,2)} op_sel:[{ws},0,0] op_sel_hi:[{ws},1,1] neg_lo:[1,0,0] neg_hi:[1,0,0]")
            for r in range(0, 16, 2): A(f"v_pk_mul_f32 {v(b+r,2)}, {v(144+32*xs+r,2)}, {v(b+r,2)}")
            for r in range(8): A(f"v_cvt_pk_bf16_f32 v{b+r}, v{b+2*r}, v{b+2*r+1}")
            for sp in range(2):
                A(f"s_mov_b32 s3, {(2*xs+sp)*20480}")
                A(f"buffer_store_dwordx4 {v(b+4*sp,4)}, v{vVA}, {R(SWS)}, s3 offen offset:{ws*512} {STF}")
    A(f"s_branch {L('done')}")
    A.label(L('spare'))
    A(f"""
    s_lshl_b32 s3, s{sRT}, 3
    s_add_u32 s3, s3, s{sW}
    s_lshl_b32 s15, s3, 4
    v_lshrrev_b32 v2, 2, v0
    v_add_u32 v3, s15, v2
    v_mul_u32_u24 v3, 1280, v3
    v_and_b32 v4, 3, v0
    v_lshl_add_u32 v3, v4, 4, v3
    s_waitcnt lgkmcnt(0)
    """)
    srd(A, SX, pX, X_BYTES); srd(A, SWS, pWS, WS_END)
    for i in range(20): A(f"buffer_load_dwordx4 {v(32+4*i,4)}, v3, {R(SX)}, 0 offen offset:{i*64}")
    A(f"""
    s_mov_b32 s46, 0x3f803f80
    v_mov_b32 v6, 0
    v_mov_b32 v7, 0
    s_lshl_b32 s15, s15, 3
    s_add_u32 s15, s15, {WS_RS}
    v_lshl_add_u32 v5, v2, 3, s15
    """)
    for i in range(20):
        A(f"s_waitcnt vmcnt({19-i})")
        for j in range(4):
            A(f"v_dot2_f32_bf16 v6, v{32+4*i+j}, s46, v6")
            A(f"v_dot2_f32_bf16 v7, v{32+4*i+j}, v{32+4*i+j}, v7")
    A("s_nop 2")
    for qp in ("[1,0,3,2]", "[2,3,0,1]"):
        A(f"v_add_f32_dpp v6, v6, v6 quad_perm:{qp} row_mask:0xf bank_mask:0xf")
        A(f"v_add_f32_dpp v7, v7, v7 quad_perm:{qp} row_mask:0xf bank_mask:0xf")
        A("s_nop 0")
    A(f"""
    v_mul_f32 v6, {hex(f32bits(1.0/640))}, v6
    v_mul_f32 v7, {hex(f32bits(1.0/640))}, v7
    v_fma_f32 v7, -v6, v6, v7
    v_max_f32 v7, 0, v7
    v_add_f32 v7, {hex(f32bits(1e-5))}, v7
    v_rsq_f32 v7, v7
    s_mov_b32 exec_lo, 0x11111111
    s_mov_b32 exec_hi, 0x11111111
    buffer_store_dwordx2 v[6:7], v5, {R(SWS)}, 0 offen {STF}
    s_mov_b64 exec, -1
    s_waitcnt vmcnt(0)
    s_barrier
    s_cmp_lg_u32 s{sW}, 0
    s_cbranch_scc1 {L('done')}
    s_lshl_b32 s3, s{sRT}, 2
    s_add_u32 s3, s3, 4
    v_mov_b32 v8, s3
    v_mov_b32 v9, 1
    s_mov_b64 exec, 1
    global_store_dword v8, v9, s[{pDBG}:{pDBG+1}] sc1
    s_mov_b64 exec, -1
    """)
    A.label(L('done'))
    A.st('p1st')
    A(f"""
    v_mov_b32 v200, 0
    s_cmp_ge_u32 s{sW}, 4
    s_cbranch_scc1 {L('s1a')}
    s_waitcnt vmcnt(0)
    s_barrier
    """)
    A.st("p1drain")
    A(f"s_branch {L('s1b')}")
    A.label(L('s1a'))
    A(f"""
    s_cmp_lg_u32 s{sW}, 4
    s_cbranch_scc1 {L('s1b')}
    s_lshl_b32 s3, s2, 7
    s_add_u32 s3, s3, {WS_FL}
    v_lshl_add_u32 v202, v0, 15, s3
    s_mov_b64 exec, 7
    buffer_store_dword v200, v202, {R(SWS)}, 0 offen sc1
    s_mov_b64 exec, -1
    global_load_dword v201, v200, s[{pDBG}:{pDBG+1}] sc1
    """)
    A.label(L('s1b'))

def gen_sync1(A):
    L = lambda x: f"L1_{x}"
    A(f"""
    s_cmp_lt_u32 s{sW}, 4
    s_cbranch_scc1 {L('s1d')}
    s_cmp_lg_u32 s{sW}, 4
    s_cbranch_scc1 {L('s1c')}
    s_waitcnt vmcnt(0)
    s_mov_b32 s14, {SPIN}
    """)
    A.label(L('rdy'))
    A(f"""
    v_readfirstlane_b32 s3, v201
    s_cmp_lg_u32 s3, 0
    s_cbranch_scc1 {L('rdy2')}
    global_load_dword v201, v200, s[{pDBG}:{pDBG+1}] sc1
    s_waitcnt vmcnt(0)
    s_sub_u32 s14, s14, 1
    s_cmp_lg_u32 s14, 0
    s_cbranch_scc1 {L('rdy')}
    """)
    A.label(L('rdy2'))
    A(f"""
    s_bfe_u32 s15, s2, 0x30003
    s_lshl_b32 s15, s15, 8
    s_add_u32 s15, s15, {WS_CNT + C1*256}
    v_mov_b32 v200, s15
    v_mov_b32 v201, 1
    s_mov_b64 exec, 1
    s_barrier
    buffer_atomic_add v201, v200, {R(SWS)}, 0 offen sc0 sc1
    s_mov_b64 exec, -1
    s_add_u32 s15, s15, {(F1 - C1)*256}
    v_lshl_add_u32 v200, v0, 11, s15
    s_waitcnt vmcnt(0)
    v_readfirstlane_b32 s3, v201
    s_cmp_lg_u32 s3, 31
    s_cbranch_scc1 {L('s1e')}
    v_mov_b32 v201, 1
    s_mov_b64 exec, 255
    buffer_store_dword v201, v200, {R(SWS)}, 0 offen sc1
    s_mov_b64 exec, -1
    """)
    A.label(L('s1e'))
    A(f"""
    s_and_b32 s15, s2, 7
    s_lshl_b32 s15, s15, 3
    s_add_u32 s15, s15, {F1}
    """)
    poll(A, 15, 8, 1, 200)
    A(f"s_branch {L('s1d')}")
    A.label(L('s1c'))
    A("s_waitcnt vmcnt(0)")
    A("s_barrier")
    A.label(L('s1d'))
    A("s_barrier")
```

```python
from mcommon import *
from m1 import gen_sync1
XR = 246
WO_LDS = 59392
sRT64, sCT8 = 56, 57
CS_LDS = 40960 + 8192
PREP_LDS = 90112

def gen_p2(A):
    L = lambda x: f"L2_{x}"
    sHD, sQB, sQG, sKH, sMODE, sCNT, sDELTA = 40, 41, 43, 44, 45, 46, 47
    sVM = 48
    sRING, sM0, sSO, sODD = 50, 51, 52, 53
    vL16, vK, vKX, vV, vIDX = 2, 4, 5, 6, 7
    QM = 8; QA = 16; QB = 20; KM = 24; KX = 32; VB = 36
    T0 = 52
    SB = 64; OB = 128; CI = 168
    vDM = 160
    PR = 168
    vPA = 164
    SLOT = 11264
    A(f"""
    s_and_b32 s3, s2, 7
    s_lshl_b32 s3, s3, 2
    s_bfe_u32 s14, s2, 0x20003
    s_add_u32 s{sHD}, s3, s14
    s_lshr_b32 s{sQB}, s2, 5
    s_mov_b32 s{sMODE}, 0
    s_mov_b32 s{sVM}, 0x000fffff
    s_mov_b32 s{sVM+1}, 0x000fffff
    s_and_b32 s{sQG}, s{sW}, 3
    s_lshr_b32 s{sKH}, s{sW}, 2
    s_and_b32 s{sODD}, s{sHD}, 1
    s_mov_b32 s{sRT64}, s{sHD}
    s_mov_b32 s{sCT8}, s{sQB}
    v_lshlrev_b32 v{vL16}, 4, v0
    v_and_b32 v{T0}, 31, v0
    v_lshrrev_b32 v{T0+1}, 5, v0
    s_mul_i32 s{sRING}, s{sKH}, {4*SLOT}
    s_mul_i32 s{sM0}, s{sQG}, 3072
    s_add_u32 s{sM0}, s{sM0}, s{sRING}
    s_lshr_b32 s96, s{sHD}, 1
    s_mul_i32 s96, s96, 10240
    """)
    A(f"""
    s_cmp_ge_u32 s{sQG}, 2
    s_cbranch_scc1 {L('vdma')}
    s_lshl_b32 s3, s{sODD}, 12
    s_add_u32 s3, s3, s96
    s_mul_i32 s14, s{sQG}, 3072
    s_add_u32 s3, s3, s14
    s_add_u32 s3, s3, {WS_K}
    v_add_u32 v{vDM}, s3, v{vL16}
    v_add_u32 v{vDM+1}, 1024, v{vDM}
    v_add_u32 v{vDM+2}, 2048, v{vDM}
    s_mov_b32 s97, 2048
    s_branch {L('dmago')}
    """)
    A.label(L('vdma'))
    A(f"""
    s_sub_u32 s3, s{sQG}, 2
    s_mul_i32 s3, s3, 192
    s_mul_i32 s14, s{sHD}, 320
    s_add_u32 s14, s14, {WS_V}
    s_cmp_eq_u32 s{sQG}, 3
    s_mov_b32 s97, 2048
    s_cmov_b32 s97, 1024
    s_cselect_b32 s15, 64, 128
    """)
    for k in range(3):
        if k < 2: A(f"v_add_u32 v{T0+2}, {64*k}, v0")
        else: A(f"v_add_u32 v{T0+2}, s15, v0")
        A(f"""
        v_add_u32 v{T0+2}, s3, v{T0+2}
        v_mul_u32_u24 v{T0+3}, 3277, v{T0+2}
        v_lshrrev_b32 v{T0+3}, 16, v{T0+3}
        v_mul_u32_u24 v{T0+4}, 20, v{T0+3}
        v_sub_u32 v{T0+2}, v{T0+2}, v{T0+4}
        v_mul_u32_u24 v{T0+3}, 10240, v{T0+3}
        v_lshl_add_u32 v{T0+3}, v{T0+2}, 4, v{T0+3}
        v_add_u32 v{vDM+k}, s14, v{T0+3}
        """)
    A.label(L('dmago'))
    A(f"""
    s_lshl_b32 s3, s{sQB}, 1
    s_lshr_b32 s14, s{sQG}, 1
    s_add_u32 s3, s3, s14
    s_mul_i32 s3, s3, 163840
    s_add_u32 s3, s3, s96
    s_and_b32 s14, s{sQG}, 1
    s_lshl_b32 s14, s14, 10
    s_add_u32 s3, s3, s14
    s_lshl_b32 s14, s{sKH}, 9
    s_add_u32 s98, s3, s14
    s_sub_u32 s99, s3, s14
    s_add_u32 s99, s99, 512
    s_mul_i32 s3, s{sODD}, 6144
    v_lshlrev_b32 v{T0+2}, 4, v{T0}
    v_lshl_add_u32 v{T0+3}, v{T0+1}, 11, v{T0+2}
    v_add_u32 v{T0+3}, s3, v{T0+3}
    s_lshl_b32 s3, s{sODD}, 3
    s_add_u32 s3, s3, 4096
    v_add_u32 v{T0+2}, s3, v{T0+2}
    s_sub_u32 s3, s99, s98
    v_mul_lo_u32 v{QB}, v{T0+1}, s3
    v_add_u32 v{QB}, v{QB}, v{T0+2}
    v_mov_b32 v{vIDX}, 0xdddddddd
    """)
    sPJ, sPB, sPP, sPD0, sP1, sP2, sPC = 100, 101, 54, 55, 46, 47, 52
    A(f"""
    s_mul_i32 s3, s2, 7
    s_add_u32 s3, s3, s{sW}
    s_sub_u32 s3, s3, 1
    s_cmp_eq_u32 s{sW}, 0
    s_cmov_b32 s3, 1790
    s_mov_b32 s{sPC}, 0x40000000
    s_cmp_lt_u32 s3, 960
    s_cbranch_scc1 {L('pgu')}
    s_sub_u32 s3, s3, 960
    s_mov_b32 s{sPP}, 1280
    s_mul_i32 s14, s3, 6554
    s_lshr_b32 s14, s14, 16
    s_mul_i32 s15, s14, 10
    s_sub_u32 s15, s3, s15
    s_lshl_b32 s{sPD0}, s15, 2
    s_mov_b32 s10, 13108
    s_mov_b32 s11, 5
    s_cmp_lt_u32 s14, 48
    s_cbranch_scc0 {L('pwo')}
    """)
    srd(A, SA, pWD, WD_BYTES)
    A(f"""
    s_mov_b32 s{sPJ}, 4
    s_mov_b32 s{sP1}, {8*1280}
    s_mov_b32 s{sP2}, {16*1280}
    s_mul_i32 s{sPB}, s14, {32*1280}
    s_mov_b32 s12, 245760
    s_mul_i32 s13, s14, 5120
    s_add_u32 s13, s13, {WS_WD}
    s_branch {L('pdone')}
    """)
    A.label(L('pwo'))
    srd(A, SA, pWO, WO_BYTES)
    A(f"""
    s_sub_u32 s14, s14, 48
    s_mov_b32 s12, 102400
    s_cmp_lt_u32 s14, 16
    s_cbranch_scc0 {L('pwob')}
    s_mov_b32 s{sPJ}, 8
    s_mov_b32 s{sP1}, {4*1280}
    s_mov_b32 s{sP2}, {20*1280}
    s_mul_i32 s{sPB}, s14, {40*1280}
    s_lshr_b32 s3, s14, 3
    s_and_b32 s14, s14, 7
    s_branch {L('pwoc')}
    """)
    A.label(L('pwob'))
    A(f"""
    s_sub_u32 s14, s14, 16
    s_mov_b32 s{sPJ}, 20
    s_mov_b32 s{sP1}, {40*1280}
    s_mov_b32 s{sP2}, {80*1280}
    s_mul_i32 s{sPB}, s14, {160*1280}
    s_add_u32 s{sPB}, s{sPB}, {16*1280}
    s_lshr_b32 s3, s14, 1
    s_and_b32 s14, s14, 1
    s_add_u32 s14, s14, 8
    """)
    A.label(L('pwoc'))
    A(f"""
    s_mul_i32 s13, s3, 7
    s_add_u32 s13, s13, 6
    s_mul_i32 s15, s3, 3
    s_sub_u32 s15, s15, 7
    s_cmp_ge_u32 s14, 7
    s_cselect_b32 s13, s15, s13
    s_add_u32 s13, s13, s14
    s_mul_i32 s13, s13, 5120
    s_add_u32 s13, s13, {WS_WO}
    s_cmp_lt_u32 s3, 2
    s_cbranch_scc1 {L('pdone')}
    s_mov_b32 s{SA+2}, 0
    s_mov_b32 s13, 0x40000000
    s_branch {L('pdone')}
    """)
    A.label(L('pgu'))
    A(f"""
    s_cmp_ge_u32 s3, 480
    s_cselect_b32 s{SA}, s{pWU}, s{pWG}
    s_cselect_b32 s{SA+1}, s{pWU+1}, s{pWG+1}
    s_cselect_b32 s13, 6144, 0
    s_cselect_b32 s14, 480, 0
    s_mov_b32 s{SA+2}, {WG_BYTES}
    s_mov_b32 s{SA+3}, 0x00020000
    s_sub_u32 s3, s3, s14
    s_mul_i32 s14, s3, 2731
    s_lshr_b32 s14, s14, 16
    s_mul_i32 s15, s14, 24
    s_sub_u32 s15, s3, s15
    s_lshl_b32 s{sPD0}, s15, 2
    s_mov_b32 s{sPP}, 3072
    s_mov_b32 s{sPJ}, 4
    s_mov_b32 s{sP1}, {8*3072}
    s_mov_b32 s{sP2}, {16*3072}
    s_mul_i32 s{sPB}, s14, {32*3072}
    s_mov_b32 s10, 10923
    s_mov_b32 s11, 6
    s_mov_b32 s12, 245760
    s_mul_i32 s14, s14, 12288
    s_add_u32 s13, s13, s14
    s_lshl_b32 s{sPC}, s15, 8
    s_add_u32 s{sPC}, s{sPC}, s13
    s_add_u32 s{sPC}, s{sPC}, {WS_CS}
    s_add_u32 s13, s13, {WS_WGU}
    """)
    A.label(L('pdone'))
    vPL = 165
    sD = 58
    sE0 = 62
    A(f"""
    v_mul_u32_u24 v{vPL}, s{sPJ}, v{T0+1}
    v_bfe_u32 v{T0+5}, v0, 3, 2
    v_add_u32 v{vPL}, v{vPL}, v{T0+5}
    v_mul_u32_u24 v{vPL}, s{sPP}, v{vPL}
    v_and_b32 v{T0+5}, 7, v0
    v_lshl_add_u32 v{vPL}, v{T0+5}, 4, v{vPL}
    s_lshl_b32 s3, s{sPD0}, 5
    s_add_u32 s3, s3, s{sPB}
    v_add_u32 v{vPL}, s3, v{vPL}
    s_lshl_b32 s{sPB}, s{sW}, 12
    s_add_u32 s{sPB}, s{sPB}, {PREP_LDS}
    v_lshrrev_b32 v{T0+5}, 4, v0
    v_bfe_u32 v{T0+6}, v0, 2, 2
    v_lshl_add_u32 v{T0+5}, v{T0+5}, 3, v{T0+6}
    v_lshlrev_b32 v{T0+5}, 7, v{T0+5}
    v_and_b32 v{T0+6}, 3, v0
    v_lshl_add_u32 v{T0+5}, v{T0+6}, 3, v{T0+5}
    v_add_u32 v{vPA}, s{sPB}, v{T0+5}
    s_mov_b32 s{sPJ}, s{sPC}
    s_add_u32 s{sPP}, s{sP1}, s{sP2}
    """)
    sPC = sPJ; sP3 = sPP; sPM = sPB
    for f in range(4):
        A(f"""
        s_add_u32 s3, s{sPD0}, {f}
        s_mul_i32 s14, s3, s10
        s_lshr_b32 s14, s14, 16
        s_mul_i32 s15, s14, s11
        s_sub_u32 s3, s3, s15
        s_mul_i32 s14, s14, s12
        s_lshl_b32 s3, s3, 10
        s_add_u32 s3, s3, s14
        s_add_u32 s{sD+f}, s3, s13
        """)
    srd(A, SB_, pX, X_BYTES)
    vXA, vCN, vCV, vTO, vL4, vWO = 202, 200, 201, 203, 204, 205
    sWOM, sONE = 10, 11
    A(f"""
    s_lshl_b32 s3, s{sRT64}, 2
    s_add_u32 s3, s3, s{sQG}
    s_mul_i32 s3, s3, {16*1280}
    s_mul_i32 s14, s{sCT8}, 160
    s_add_u32 s3, s3, s14
    s_lshl_b32 s14, s{sKH}, 30
    s_add_u32 s3, s3, s14
    v_and_b32 v{vXA}, 15, v0
    v_mul_u32_u24 v{vXA}, 1280, v{vXA}
    v_lshrrev_b32 v{vTO}, 4, v0
    v_lshl_add_u32 v{vXA}, v{vTO}, 3, v{vXA}
    v_add_u32 v{vXA}, s3, v{vXA}
    s_lshr_b32 s3, s2, 3
    s_lshl_b32 s3, s3, 3
    s_add_u32 s3, s3, s{sW}
    s_bfe_u32 s14, s2, 0x10002
    s_lshl_b32 s14, s14, 8
    s_add_u32 s3, s3, s14
    s_mul_i32 s3, s3, 7680
    s_add_u32 s3, s3, {WS_WGU}
    v_min_u32 v{vTO}, 5, v0
    v_lshl_add_u32 v{vTO}, v{vTO}, 7, s3
    v_add_u32 v210, 3840, v{vTO}
    v_lshlrev_b32 v{vL4}, 2, v0
    s_mul_i32 s3, s{sCT8}, 102400
    s_lshl_b32 s{sWOM}, s{sW}, 10
    s_add_u32 s3, s3, s{sWOM}
    s_add_u32 s3, s3, {WS_WO + 30720}
    v_add_u32 v{vWO}, s3, v{vL16}
    s_add_u32 s{sWOM}, s{sWOM}, {WO_LDS + 30720}
    s_cmp_ge_u32 s{sW}, 6
    s_cselect_b32 s12, 7, 8
    s_lshl_b32 s12, s12, 13
    s_add_u32 s13, s12, s{sWOM}
    s_lshl_b32 s3, s{sODD}, 11
    s_add_u32 s3, s3, s{sRING}
    v_lshlrev_b32 v{vK}, 4, v{T0}
    v_lshl_add_u32 v{vK}, v{T0+1}, 11, v{vK}
    v_add_u32 v{vK}, s3, v{vK}
    s_mul_i32 s3, s{sODD}, {8-4096}
    s_add_u32 s3, s3, 4096
    s_add_u32 s3, s3, s{sRING}
    v_add_u32 v{vKX}, s3, v{vL16}
    v_mul_u32_u24 v{vV}, 320, v{T0+1}
    v_lshl_add_u32 v{vV}, v{T0}, 4, v{vV}
    v_add_u32 v{vV}, s{sRING}, v{vV}
    s_mul_i32 s{sSO}, s{sKH}, {8*163840}
    s_add_u32 s97, s97, s{sM0}
    """)
    A(f"""
    v_cmp_eq_u32 vcc, 20, v{T0}
    v_mov_b32 v{VB}, 0x3f803f80
    s_nop 0
    v_cndmask_b32 v{VB}, 0, v{VB}, vcc
    """)
    for i in range(1, 16): A(f"v_mov_b32 v{VB+i}, v{VB}")
    for i in range(32): A(f"v_mov_b32 v{OB+i}, 0")
    vXW, vXR, vOM, vOE = T0+4, T0+7, T0+6, T0+5
    A(f"""
    s_mul_i32 s3, s{sQG}, 3072
    s_add_u32 s14, s3, s{sRING}
    v_add_u32 v{vXW}, s14, v{vL16}
    s_sub_u32 s14, {4*SLOT}, s{sRING}
    s_add_u32 s14, s14, s3
    v_add_u32 v{vXR}, s14, v{vL16}
    s_lshl_b32 s3, s{sQB}, 4
    s_lshl_b32 s14, s{sQG}, 2
    s_add_u32 s3, s3, s14
    s_lshl_b32 s14, s{sKH}, 1
    s_add_u32 s3, s3, s14
    v_bfe_u32 v{vOE}, v0, 4, 1
    v_add_u32 v{vOE}, s3, v{vOE}
    v_mul_u32_u24 v{vOE}, 20480, v{vOE}
    v_and_b32 v{T0+8}, 15, v0
    s_lshl_b32 s3, s{sHD}, 9
    s_add_u32 s3, s3, {WS_O}
    v_lshl_add_u32 v{vOM}, v{T0+1}, 8, s3
    v_lshl_add_u32 v{vOM}, v{T0+8}, 4, v{vOM}
    v_add_u32 v{vOM}, v{vOM}, v{vOE}
    s_lshl_b32 s3, s{sHD}, 7
    s_add_u32 s3, s3, {WS_O + 16384}
    v_lshl_add_u32 v{vOE}, v{T0+8}, 3, v{vOE}
    v_add_u32 v{vOE}, s3, v{vOE}
    """)
    gen_sync1(A)
    A.st("s1")
    q = []
    def vm(tag, text):
        q.append(tag); return text
    def after(*tags):
        idx = max(k for k, e in enumerate(q) if e in tags)
        return len(q) - 1 - idx
    def dma_items(c):
        it = []
        for k in range(3):
            m = f"s_add_u32 m0, s{sM0 if k < 2 else 97}, {(c&3)*SLOT + (k*1024 if k < 2 else 0)}"
            ld = (f"ch{c}", f"buffer_load_dwordx4 v{vDM+k}, {R(SWS)}, s{sSO} offen {LDF} lds")
            it.append([m]); it.append([ld] + ([f"s_add_u32 s{sSO}, s{sSO}, 163840"] if k == 2 else []))
        return it
    def emit(item):
        for x in item:
            if isinstance(x, tuple): A(vm(*x))
            elif callable(x): x()
            else: A(x)
    for x in (f"buffer_load_dwordx4 {v(QM,4)}, v{T0+3}, {R(SWS)}, s98 offen {LDF}",
              f"buffer_load_dwordx4 {v(QM+4,4)}, v{T0+3}, {R(SWS)}, s99 offen {LDF}",
              f"buffer_load_dwordx2 {v(QA,2)}, v{QB}, {R(SWS)}, s98 offen {LDF}"):
        A(vm("q", x))
    A0 = int(os.environ.get("A0", "1"))
    for c in range(A0):
        for k, it in enumerate(dma_items(c)):
            emit(it)
            if k % 2 == 0: A("s_nop 0")
    A(f"""
    s_bfe_u32 s3, s2, 0x30003
    s_lshl_b32 s3, s3, 8
    s_add_u32 s3, s3, {WS_CNT + CP*256}
    v_mov_b32 v206, s3
    v_mov_b32 v207, 1
    s_add_u32 s3, s3, {(FP - CP)*256}
    v_lshl_add_u32 v212, v0, 11, s3
    v_mov_b32 v213, 1
    s_and_b32 s3, s2, 7
    s_lshl_b32 s3, s3, 11
    s_add_u32 s3, s3, {WS_CNT + FP*256}
    v_and_b32 v{vCN}, 7, v0
    v_lshl_add_u32 v{vCN}, v{vCN}, 8, s3
    s_cmp_eq_u32 s{sW}, 0
    s_cselect_b32 s62, 255, 0
    s_mov_b32 s63, 0
    s_mov_b32 s{sONE}, 0x3f803f80
    v_mov_b32 v{vCV}, 1
    s_lshl_b32 s3, s{sQB}, 5
    s_add_u32 s3, s3, s{sHD}
    s_lshl_b32 s3, s3, 3
    s_add_u32 s3, s3, s{sW}
    s_mul_i32 s3, s3, 3072
    s_add_u32 s3, s3, {WS_G}
    v_add_u32 v224, s3, v{vL16}
    v_mov_b32 v226, -1
    v_mov_b32 v227, -1
    v_mov_b32 v228, -1
    v_mov_b32 v229, -1
    """)
    def so(g):
        return ((g >> 2) & 3) * SLOT
    def rdK(g): A(f"ds_read_b128 {v(KM+4*(g&1),4)}, v{vK} offset:{so(g) + (g&3)*512}")
    def rdKX(c, p): A(f"ds_read_b64 {v(KX+2*p,2)}, v{vKX} offset:{(c&3)*SLOT + p*1024}")
    def rdV(g):
        A(f"s_mov_b64 exec, s[{sVM}:{sVM+1}]")
        for sp in range(2):
            A(f"ds_read_b128 {v(VB+8*(g&1)+4*sp,4)}, v{vV} offset:{so(g) + 6144+(2*(g&3)+sp)*640}")
        A("s_mov_b64 exec, -1")
    def S(g, qs): return SB + 32*(g & 1) + 16*qs
    def qx(g, c0="0"):
        A(f"v_mfma_f32_32x32x4_2b_bf16 {v(S(g,0),32)}, {v(KX+2*((g&3)>>1),2)}, {v(QA,2)}, {c0} cbsz:1 abid:{g&1}")
    def qm(g, qs):
        A(f"v_mfma_f32_32x32x16_bf16 {v(S(g,qs),16)}, {v(KM+4*(g&1),4)}, {v(QM+4*qs,4)}, {v(S(g,qs),16)}")
    def pv(t, sp):
        g, qs = (t >> 1), t & 1
        A(f"v_smfmac_f32_32x32x32_bf16 {v(OB+16*qs,16)}, {v(VB+8*(g&1)+4*sp,4)}, {v(S(g,qs)+8*sp,8)}, v{vIDX}")
    def ex(t, a_, b_):
        for i in range(a_, b_): A(f"v_exp_f32 v{S(t>>1,t&1)+i}, v{S(t>>1,t&1)+i}")
    if "aq" in A.SET and A.STAMPS:
        A.st("ai")
        A(f"s_waitcnt vmcnt({after('q')})")
        A.st("aq")
    A(f"s_waitcnt vmcnt({after('ch0')})")
    A.st("ac")
    A("s_barrier")
    A.st("a0")
    rdKX(0, 0); rdK(0); rdK(1); rdKX(0, 1); rdV(0)
    A("s_waitcnt lgkmcnt(5)")
    qx(0)
    for c in range(A0, 2):
        for k, it in enumerate(dma_items(c)):
            emit(it)
            if k % 2 == 0: A("s_nop 0")
    A("s_waitcnt lgkmcnt(0)")
    A(f"s_nop {6 if A0 == 1 else 15}")
    if A0 != 1: A("s_nop 1")
    qm(0, 0); qm(0, 1)
    A("s_nop 9")
    A.st("a1")
    side = {}
    def put(T, items): side.setdefault(T, []).extend(items)
    put(0, dma_items(2) + dma_items(3))
    prep = []
    for k, sofs in enumerate(("0", f"s{sP1}", f"s{sP2}", f"s{sP3}")):
        prep += [[f"s_add_u32 m0, s{sPM}, {k*1024}"], [("prep", f"buffer_load_dwordx4 v{vPL}, {R(SA)}, {sofs} offen lds")]]
    put(3, prep)
    put(TX4 := (13 if int(os.environ.get("TD", "28")) > 20 else 21), [])
    TXL = int(os.environ.get("TXL", "15")); TXS = int(os.environ.get("TXS", "1"))
    for mt in range(5):
        put(TXL + (mt*TXS)//2, [[("x", f"buffer_load_dwordx2 {v(XR+2*mt,2)}, v{vXA}, {R(SB_)}, 0 offen offset:{mt*32}")]])
    TP = int(os.environ.get("TP", "19"))
    TD = int(os.environ.get("TD", "28"))
    put(TP, [[lambda: A(f"s_waitcnt vmcnt({after('prep')})")] + [f"ds_read_b64_tr_b16 {v(PR+2*u,2)}, v{vPA} offset:{u*512}" for u in range(2)]] +
            [[f"ds_read_b64_tr_b16 {v(PR+4*f+2*u,2)}, v{vPA} offset:{u*512 + f*32}" for u in range(2)] for f in range(1, 4)])
    put(TP+1, [[("pst", f"buffer_store_dwordx4 {v(PR+4*f,4)}, v{vL16}, {R(SWS)}, s{sD+f} offen {STF}")] for f in range(4)])
    put(TP+2, [[f"v_dot2_f32_bf16 v{PR+16+f}, v{PR+4*f+j}, s{sONE}, {'0' if j == 0 else 'v%d' % (PR+16+f)}" for f in range(4)] for j in range(4)])
    put(TP+3, [[f"v_permlane16_swap_b32 v{PR+16}, v{PR+17}", f"v_permlane16_swap_b32 v{PR+18}, v{PR+19}",
              f"v_add_f32 v{PR+16}, v{PR+16}, v{PR+17}", f"v_add_f32 v{PR+18}, v{PR+18}, v{PR+19}"],
             [f"v_permlane32_swap_b32 v{PR+16}, v{PR+18}", f"v_add_f32 v{PR+16}, v{PR+16}, v{PR+18}",
              ("pst", f"buffer_store_dword v{PR+16}, v{vL4}, {R(SWS)}, s{sPC} offen {STF}")]])
    put(TD+1, [["s_and_b64 exec, s[62:63], 1", ("arr", f"buffer_atomic_add v207, v206, {R(SWS)}, 0 offen sc0 sc1"), "s_mov_b64 exec, -1"]])
    put(TX4, dma_items(4))
    put(29, dma_items(5) + dma_items(6))
    put(TD+4, [[lambda: A(f"s_waitcnt vmcnt({after('arr')})"), "v_cmp_eq_u32 vcc, 31, v207", "s_cmp_lg_u64 vcc, 0", "s_cselect_b64 exec, s[62:63], 0",
             ("flg", f"buffer_store_dword v213, v212, {R(SWS)}, 0 offen sc1"), "s_mov_b64 exec, -1"]])
    put(37, dma_items(7))
    TF = int(os.environ.get("TF", "33"))
    if "4" in SENT:
        for k in range(3):
            put(TF + 2*k, [[("fill", f"buffer_store_dwordx4 v[226:229], v224, {R(SWS)}, 0 offen offset:{k*1024} {STF}")]])
    TC = int(os.environ.get("TC", "40"))
    put(TC-2, [["s_mov_b64 exec, s[62:63]", ("poll", f"buffer_load_dword v{vCV}, v{vCN}, {R(SWS)}, 0 offen sc1"), "s_mov_b64 exec, -1"]])
    WO0 = int(os.environ.get("WO0", TC+2)); WOS = int(os.environ.get("WOS", "2"))
    for k in range(9):
        if k < 8:
            it = [[f"s_add_u32 m0, s{sWOM}, {k*8192}", f"s_mov_b32 s3, {k*8192}"], [("wo", f"buffer_load_dwordx4 v{vWO}, {R(SWS)}, s3 offen {LDF} lds")]]
        else:
            it = [["s_mov_b32 m0, s13"], [("wo", f"buffer_load_dwordx4 v{vWO}, {R(SWS)}, s12 offen {LDF} lds")]]
        put(WO0 + WOS*k, it)
    TO0 = int(os.environ.get("TO0", TC+1)); TOS = int(os.environ.get("TOS", "2"))
    for k in range(0 if "notouch" in OPT else 10):
        put(TO0 + TOS*k, [[("touch", f"buffer_load_dword v{214+k}, v{vTO if k < 5 else 210}, {R(SWS)}, 0 offen offset:{(k%5)*768} {LDF}")]])
    waits = {4: ("ch1",), 12: ("ch2", "ch3"), 28: ("ch4",), 36: ("ch5", "ch6"), 52: ("ch7",)}
    waits[TD] = waits.get(TD, ()) + ("pst",)
    waits[TC] = waits.get(TC, ()) + ("poll",)
    PRIO = os.environ.get("PRIO", "8")
    prio = {}
    if PRIO == "8":
        for T in (20, 44, 60): waits.setdefault(T, ())
        for T in range(5, 64, 2): prio[T] = 3 - (((T - 5) >> 1) & 3)
        prio[0] = 2; prio[1] = 1; prio[3] = 0
        prio[61] = 2; prio[62] = 1; prio[63] = 0
    elif PRIO == "4":
        for T in range(8, 64, 4): waits.setdefault(T, ())
        for T in range(1, 64): prio[T] = 3 - ((T - 1) & 3)
        prio[0] = 3
    assert max(side) < 63
    pend = []
    def slot():
        if pend: emit(pend.pop(0))
    for T in range(64):
        c, t = T >> 3, T & 7
        pend += side.get(T, [])
        if T > 0: pv(T-1, 1)
        if T in prio: A(f"s_setprio {prio[T]}")
        slot()
        ex(T, 0, 4)
        if T < 62:
            if T & 1 == 0: qx((T >> 1) + 1)
            else: qm((T >> 1) + 1, 0)
        slot()
        ex(T, 4, 8)
        if T < 62 and T & 1:
            qm((T >> 1) + 1, 1)
            slot()
        ex(T, 8, 12)
        pv(T, 0)
        if T in waits:
            if waits[T]: A(f"s_waitcnt vmcnt({after(*waits[T])})")
            if T == TD: A("s_waitcnt vmcnt(0)")
            if T == TC:
                assert not pend
                A(f"""
                v_cmp_le_u32 vcc, 1, v{vCV}
                s_cmp_eq_u64 vcc, -1
                s_cbranch_scc0 {L('cpwait')}
                """)
                A.label(L('cpback'))
            A("s_barrier")
            if t == 4: A.st(f"it{c}")
        else: slot()
        ex(T, 12, 16)
        A("s_waitcnt lgkmcnt(0)")
        g = T >> 1
        n0 = len(A.lines)
        if t & 1 == 0:
            if g + 1 < 32: rdV(g + 1)
            if t == 4 and c < 7: rdKX(c+1, 0)
        else:
            if g + 2 < 32: rdK(g + 2)
            if t == 7 and c < 7: rdKX(c+1, 1)
        if len(A.lines) == n0: A("s_nop 0")
    assert not pend
    pv(63, 1)
    A.st("aend")
    A.label(L('epi'))
    A("s_setprio 0")
    A("s_nop 10")
    for i in (2, 0, 1): A(f"ds_write_b128 v{vXW}, {v(OB+16+4*i,4)} offset:{i*1024}")
    A(f"""
    s_waitcnt lgkmcnt(0)
    s_barrier
    """)
    A.st("ax2")
    for i in (2, 0, 1): A(f"ds_read_b128 {v(SB+4*i,4)}, v{vXR} offset:{i*1024}")
    A(f"v_subrev_u32 v211, 30720, v{vWO}")
    for k in range(4):
        if k < 3:
            A(f"s_sub_u32 m0, s{sWOM}, {30720 - k*8192}")
            A(f"s_mov_b32 s3, {k*8192}")
        else:
            A(f"s_sub_u32 m0, s13, {30720 + 5*8192}")
            A(f"s_sub_u32 s3, s12, {5*8192}")
        A(f"buffer_load_dwordx4 v211, {R(SWS)}, s3 offen {LDF} lds")
    A(f"""
    s_waitcnt lgkmcnt(2)
    v_add_f32 v{OB+12}, v{OB+8}, v{SB+8}
    v_add_f32 v{OB+13}, v{OB+8}, v{SB+8}
    s_nop 1
    v_permlane32_swap_b32 v{OB+13}, v{OB+12}
    v_rcp_f32 v{OB+14}, v{OB+12}
    s_waitcnt lgkmcnt(0)
    """)
    for i in range(0, 12, 2): A(f"v_pk_add_f32 {v(OB+i,2)}, {v(OB+i,2)}, {v(SB+i,2)}")
    for i in range(0, 12, 2): A(f"v_pk_mul_f32 {v(OB+i,2)}, {v(OB+i,2)}, {v(OB+14,2)} op_sel_hi:[1,0]")
    for i in range(6): A(f"v_cvt_pk_bf16_f32 v{SB+i}, v{OB+2*i}, v{OB+2*i+1}")
    A(f"""
    buffer_store_dwordx4 {v(SB,4)}, v{vOM}, {R(SWS)}, 0 offen {STF}
    s_mov_b32 exec_hi, 0
    buffer_store_dwordx2 {v(SB+4,2)}, v{vOE}, {R(SWS)}, 0 offen {STF}
    s_mov_b64 exec, -1
    v_mov_b32 v{T0+9}, 0
    """)
    A.st("ast")
    for i in range(12): A(f"v_fmac_f32 v{T0+9}, 0, v{OB+i}")
    FLG = 20480
    A(f"""
    v_cmp_u_f32 s[14:15], v{T0+9}, v{T0+9}
    s_mov_b32 s3, {hex(f32bits(2.0**-40))}
    v_cmp_nle_f32 vcc, s3, v{OB+12}
    s_or_b64 s[14:15], s[14:15], vcc
    s_mov_b32 s3, {hex(f32bits(2.0**40))}
    v_cmp_nge_f32 vcc, s3, v{OB+12}
    s_or_b64 s[14:15], s[14:15], vcc
    s_cselect_b32 s3, 1, 0
    v_mov_b32 v{T0+9}, s3
    s_lshl_b32 s3, s{sW}, 2
    v_mov_b32 v{T0+8}, s3
    ds_write_b32 v{T0+8}, v{T0+9} offset:{FLG}
    v_and_b32 v{T0+8}, 28, v{vL4}
    s_waitcnt lgkmcnt(0)
    s_barrier
    ds_read_b32 v{T0+9}, v{T0+8} offset:{FLG}
    s_waitcnt lgkmcnt(0)
    v_cmp_ne_u32 vcc, 0, v{T0+9}
    s_cmp_eq_u64 vcc, 0
    s_cbranch_scc1 {L('done')}
    s_cmp_lg_u32 s{sMODE}, 0
    s_cbranch_scc1 {L('done')}
    s_mov_b32 s{sMODE}, 1
    s_waitcnt vmcnt(0)
    s_barrier
    """)
    MX = T0 + 10
    A(f"""
    v_mov_b32 v{MX}, 0xff800000
    v_mov_b32 v{MX+1}, 0xff800000
    s_add_u32 s15, s96, {WS_K}
    s_mov_b32 s{sCNT}, 0
    """)
    A.label(L('mloop'))
    for kt in range(4):
        A(f"buffer_load_dwordx4 {v(KM,4)}, v{T0+3}, {R(SWS)}, s15 offen offset:{kt*512} {LDF}")
        A(f"buffer_load_dwordx2 {v(KX,2)}, v{T0+2}, {R(SWS)}, s15 offen offset:{kt*512} {LDF}")
        A("s_waitcnt vmcnt(0)")
        qx(0)
        A("s_nop 15")
        A("s_nop 1")
        qm(0, 0); qm(0, 1)
        A("s_nop 15")
        for qs in range(2):
            for i in range(8):
                A(f"v_max3_f32 v{MX+qs}, v{SB+16*qs+2*i}, v{SB+16*qs+2*i+1}, v{MX+qs}")
    A(f"""
    s_add_u32 s15, s15, 163840
    s_add_u32 s{sCNT}, s{sCNT}, 1
    s_cmp_lt_u32 s{sCNT}, 16
    s_cbranch_scc1 {L('mloop')}
    v_mov_b32 v{T0+9}, v{MX}
    v_mov_b32 v{T0+8}, v{MX+1}
    s_nop 1
    v_permlane32_swap_b32 v{T0+9}, v{MX}
    v_permlane32_swap_b32 v{T0+8}, v{MX+1}
    v_max_f32 v{MX}, v{MX}, v{T0+9}
    v_max_f32 v{MX+1}, v{MX+1}, v{T0+8}
    """)
    for qs in range(2):
        for i in range(16): A(f"v_sub_f32 v{CI+16*qs+i}, 0, v{MX+qs}")
    for i in range(32): A(f"v_mov_b32 v{OB+i}, 0")
    A(f"""
    s_mul_i32 s14, s{sKH}, {8*163840}
    s_add_u32 s15, s96, {WS_K}
    s_add_u32 s15, s15, s14
    s_mul_i32 s3, s{sHD}, 320
    s_add_u32 s14, s14, s3
    s_add_u32 s14, s14, {WS_V}
    v_mul_u32_u24 v{T0+8}, 10240, v{T0+1}
    v_lshl_add_u32 v{T0+8}, v{T0}, 4, v{T0+8}
    v_add_u32 v{T0+9}, 20480, v{T0+8}
    s_mov_b32 s{sCNT}, 0
    """)
    A.label(L('floop'))
    A(f"""
    buffer_load_dwordx4 {v(KM,4)}, v{T0+3}, {R(SWS)}, s15 offen {LDF}
    buffer_load_dwordx2 {v(KX,2)}, v{T0+2}, {R(SWS)}, s15 offen {LDF}
    s_mov_b64 exec, s[{sVM}:{sVM+1}]
    buffer_load_dwordx4 {v(VB,4)}, v{T0+8}, {R(SWS)}, s14 offen {LDF}
    buffer_load_dwordx4 {v(VB+4,4)}, v{T0+9}, {R(SWS)}, s14 offen {LDF}
    s_mov_b64 exec, -1
    s_waitcnt vmcnt(0)
    """)
    qx(0, v(CI, 32))
    A("s_nop 15")
    A("s_nop 1")
    qm(0, 0); qm(0, 1)
    A("s_nop 15")
    for qs in range(2): ex(qs, 0, 16)
    A("s_nop 1")
    for qs in range(2):
        pv(qs, 0); pv(qs, 1)
    A(f"""
    s_add_u32 s14, s14, 40960
    s_add_u32 s15, s15, 512
    s_add_u32 s{sCNT}, s{sCNT}, 1
    s_and_b32 s3, s{sCNT}, 3
    s_cmp_eq_u32 s3, 0
    s_cselect_b32 s3, {163840 - 2048}, 0
    s_add_u32 s15, s15, s3
    s_cmp_lt_u32 s{sCNT}, 32
    s_cbranch_scc1 {L('floop')}
    s_branch {L('epi')}
    """)
    A.label(L('cpwait'))
    A(f"""
    s_and_b32 s15, s2, 7
    s_lshl_b32 s15, s15, 3
    s_add_u32 s15, s15, {FP}
    """)
    poll(A, 15, 8, 1, 200)
    A(f"s_branch {L('cpback')}")
    A.label(L('done'))
    A(f"s_lshl_b32 s54, s{sQB}, 5")
    A(f"s_add_u32 s54, s54, s{sHD}")
```

```python
from mcommon import *
from m2 import XR, WO_LDS, sRT64, sCT8, CS_LDS
WR = 160
CS = 216
sNT, sKH = 43, 44
sRT128, sCT16 = 40, 41
SLOT4 = 40960

W3 = [int(x) for x in os.environ.get('W3', '0,1,3').split(',')]
assert W3[0] <= 1
def issueW4(A, c):
    for i in range(6):
        A(f"s_add_u32 m0, s46, {(c%4)*SLOT4 + 16384 + i*1024}")
        A(f"s_add_u32 s3, s49, {i*1024}")
        A(f"buffer_load_dwordx4 v4, {R(SWS)}, s3 offen {LDF} lds")
    A(f"""
    s_add_u32 s49, s49, 24576
    s_cmp_eq_u32 s49, 245760
    s_cmov_b32 s49, 0
    """)

def issueD(A, j):
    for i in range(10):
        A(f"s_add_u32 m0, s50, {((2+j)%4)*SLOT4 + i*1024}")
        A(f"s_mov_b32 s3, {j*20480 + i*1024}")
        A(f"buffer_load_dwordx4 v6, {R(SWS)}, s3 offen {LDF} lds")

def gen_p3(A):
    L = lambda x: f"L3_{x}"
    vL16 = 2
    vWA, vWB, vOX = 4, 5, 6
    OF = 32
    WF = 72
    ACC = 132
    A.label(L('setup'))
    sOO, sTG = 46, 47
    A(f"""
    s_lshl_b32 s{sTG}, s{sRT64}, 2
    s_add_u32 s{sTG}, s{sTG}, s{sNT}
    s_mul_i32 s{sOO}, s{sTG}, 20480
    s_add_u32 s{sOO}, s{sOO}, {WS_O}
    s_lshl_b32 s3, s{sKH}, 13
    s_add_u32 s48, s{sOO}, s3
    s_add_u32 s49, s48, 4096
    s_lshl_b32 s3, s{sKH}, 11
    s_add_u32 s50, s{sOO}, s3
    s_add_u32 s50, s50, 16384
    v_lshrrev_b32 v7, 4, v0
    v_and_b32 v8, 15, v0
    v_lshlrev_b32 v{vOX}, 8, v7
    v_lshl_add_u32 v{vOX}, v8, 3, v{vOX}
    s_mul_i32 s3, s{sKH}, {7*5120}
    s_add_u32 s3, s3, {WO_LDS + 30720}
    v_add_u32 v{vWA}, s3, v{vL16}
    s_mul_i32 s3, s{sKH}, {3*5120}
    s_add_u32 s3, s3, {WO_LDS}
    v_add_u32 v{vWB}, s3, v{vL16}
    s_and_b32 s3, s2, 3
    s_lshl_b32 s3, s3, 2
    s_bfe_u32 s14, s2, 0x20003
    s_add_u32 s{sRT128}, s3, s14
    s_bfe_u32 s3, s2, 0x10002
    s_lshl_b32 s3, s3, 3
    s_lshr_b32 s14, s2, 5
    s_add_u32 s{sCT16}, s3, s14
    s_and_b32 s3, s{sW}, 1
    s_mul_i32 s3, s3, 192
    s_add_u32 s3, s3, {CS_LDS}
    v_lshl_add_u32 v9, v7, 4, s3
    """)
    A(f"""
    s_mul_i32 s51, s{sTG}, 20480
    s_mul_i32 s3, s{sCT8}, 2560
    s_add_u32 s51, s51, s3
    s_add_u32 s51, s51, {WS_H}
    v_and_b32 v21, 1, v7
    v_lshlrev_b32 v21, 9, v21
    v_lshrrev_b32 v22, 1, v7
    v_lshl_add_u32 v21, v22, 8, v21
    v_lshl_add_u32 v21, v8, 4, v21
    s_lshl_b32 s52, s{sTG}, 10
    s_lshl_b32 s3, s{sCT8}, 7
    s_add_u32 s52, s52, s3
    s_add_u32 s52, s52, {WS_ST}
    v_lshlrev_b32 v22, 3, v8
    v_mov_b32 v28, 0
    v_mov_b32 v29, 0
    s_mov_b32 s53, 0x3f803f80
    """)
    for mt in range(5):
        A(f"""
        v_lshlrev_b32 v{ACC+4*mt}, 16, v{XR+2*mt}
        v_and_b32 v{ACC+4*mt+1}, 0xffff0000, v{XR+2*mt}
        v_lshlrev_b32 v{ACC+4*mt+2}, 16, v{XR+2*mt+1}
        v_and_b32 v{ACC+4*mt+3}, 0xffff0000, v{XR+2*mt+1}
        """)
    A(f"""
    s_mul_i32 s3, s{sNT}, 5120
    s_cmp_eq_u32 s{sNT}, 3
    s_cmov_b32 s3, {SLOT4}
    v_add_u32 v20, s3, v{vL16}
    """)
    PC = 160
    A(f"""
    s_sub_u32 s3, s{sW}, 1
    s_lshl_b32 s3, s3, 6
    v_add_u32 v10, s3, v0
    v_cmp_le_u32 vcc, 96, v10
    v_mov_b32 v11, {6144 - 384}
    v_lshlrev_b32 v10, 2, v10
    v_cndmask_b32 v11, 0, v11, vcc
    v_add_u32 v11, v11, v10
    s_mul_i32 s55, s{sCT16}, 384
    s_add_u32 s55, s55, {WS_CS}
    s_waitcnt vmcnt(0)
    s_barrier
    """)
    A.st("adrain")
    A(f"""
    s_cmp_lg_u32 s{sW}, 0
    s_cbranch_scc1 {L('nopoll')}
    """)
    signal(A, 0, 54, 200)
    A(f"""
    s_lshr_b32 s15, s{sRT64}, 2
    s_lshl_b32 s15, s15, 5
    """)
    waitfl(A, 0, 15, 32, 200)
    A(f"s_branch {L('np')}")
    A.label(L('nopoll'))
    A(f"""
    s_cmp_lt_u32 s{sW}, 4
    s_cbranch_scc1 {L('pcs')}
    s_setprio 2
    s_branch {L('np')}
    """)
    A.label(L('pcs'))
    for k in range(20):
        A(f"buffer_load_dword v{PC+k}, v11, {R(SWS)}, s55 offen {LDF}")
        if k < 19: A("s_add_u32 s55, s55, 12288")
    A.label(L('np'))
    A("s_barrier")
    A.st("s2")
    for i in range(8):
        A(f"buffer_load_dwordx4 {v(OF+4*i,4)}, v{vL16}, {R(SWS)}, s{48 + (i>>2)} offen offset:{(i&3)*1024} {LDF}")
    for e in range(2):
        for u in range(2):
            A(f"buffer_load_dwordx2 {v(OF+32+4*e+2*u,2)}, v{vOX}, {R(SWS)}, s50 offen offset:{e*1024 + u*128} {LDF}")
    def wreads(i):
        return [f"ds_read_b128 {v(WF+20*(i%3)+4*mt,4)}, v{vWA if i < 7 else vWB} offset:{(i if i < 7 else i-7)*5120 + mt*1024}" for mt in range(5)]
    for x in wreads(0) + wreads(1): A(x)
    for i in range(10):
        n = (11 - i) if i < 8 else (2 if i == 8 else 0)
        A(f"s_waitcnt vmcnt({n}) lgkmcnt({5 if i < 9 else 0})")
        if i == 1: A.st("p3i1")
        r = wreads(i+2) if i < 8 else [None]*5
        for mt in range(5):
            acc = v(ACC+4*mt, 4)
            A(f"v_mfma_f32_16x16x32_bf16 {acc}, {v(WF+20*(i%3)+4*mt,4)}, {v(OF+4*i,4)}, {acc}")
            if r[mt]: A(r[mt])
    A.st("p3end")
    A(f"""
    s_cmp_eq_u32 s{sKH}, 0
    s_cbranch_scc1 {L('fin')}
    s_nop 5
    """)
    for mt in range(5): A(f"ds_write_b128 v20, {v(ACC+4*mt,4)} offset:{mt*1024}")
    A("s_setprio 0")
    A(f"""
    s_mul_i32 s46, s{sNT}, 6144
    s_mul_i32 s47, s{sCT16}, 245760
    s_add_u32 s47, s47, s46
    s_add_u32 s47, s47, {WS_WGU}
    v_add_u32 v4, s47, v{vL16}
    s_and_b32 s3, s{sCT16}, 7
    s_mul_i32 s3, s3, 10
    s_lshr_b32 s3, s3, 3
    s_and_b32 s14, s{sRT128}, 3
    s_mul_i32 s14, s14, 10
    s_lshr_b32 s14, s14, 2
    s_add_u32 s3, s3, s14
    s_cmp_ge_u32 s3, 10
    s_cselect_b32 s14, 10, 0
    s_sub_u32 s3, s3, s14
    """)
    if "norot4" in OPT: A("s_mov_b32 s3, 0")
    A(f"""
    s_lshl_b32 s48, s3, 11
    s_mul_i32 s49, s3, 24576
    """)
    for k, n in enumerate(W3):
        for c in range(sum(W3[:k]), sum(W3[:k+1])): issueW4(A, c)
        if k == 0: A("s_waitcnt lgkmcnt(0)")
        if k < 2: A("s_barrier")
    A(f"s_branch {L('done')}")
    A.label(L('fin'))
    A("s_barrier")
    A.st("p3red")
    for mt in range(5): A(f"ds_read_b128 {v(WF+4*mt,4)}, v20 offset:{mt*1024}")
    for mt in range(5):
        A(f"s_waitcnt lgkmcnt({4-mt})")
        for j in (0, 2): A(f"v_pk_add_f32 {v(ACC+4*mt+j,2)}, {v(ACC+4*mt+j,2)}, {v(WF+4*mt+j,2)}")
        A(f"v_cvt_pk_bf16_f32 v{OF+2*mt}, v{ACC+4*mt}, v{ACC+4*mt+1}")
        A(f"v_cvt_pk_bf16_f32 v{OF+2*mt+1}, v{ACC+4*mt+2}, v{ACC+4*mt+3}")
    A(f"v_mov_b32 v{OF+10}, v{OF+8}")
    A(f"v_mov_b32 v{OF+11}, v{OF+9}")
    for p in range(3):
        if p == 2: A("s_nop 0")
        A(f"v_permlane16_swap_b32 v{OF+4*p}, v{OF+4*p+2}")
        A(f"v_permlane16_swap_b32 v{OF+4*p+1}, v{OF+4*p+3}")
    A(f"""
    buffer_store_dwordx4 {v(OF,4)}, v21, {R(SWS)}, s51 offen {STF}
    buffer_store_dwordx4 {v(OF+4,4)}, v21, {R(SWS)}, s51 offen offset:1024 {STF}
    s_mov_b32 exec_lo, 0xffff
    s_mov_b32 exec_hi, 0xffff
    buffer_store_dwordx4 {v(OF+8,4)}, v21, {R(SWS)}, s51 offen offset:2048 {STF}
    s_mov_b64 exec, -1
    """)
    A(f"v_cvt_pk_bf16_f32 v{XR+8}, v{ACC+16}, v{ACC+17}")
    A(f"v_cvt_pk_bf16_f32 v{XR+9}, v{ACC+18}, v{ACC+19}")
    for r in [OF+k for k in range(8)] + [XR+8, XR+9]:
        A(f"v_dot2_f32_bf16 v28, v{r}, s53, v28")
        A(f"v_dot2_f32_bf16 v29, v{r}, v{r}, v29")
    A(f"""
    s_nop 2
    v_mov_b32 v30, v28
    v_mov_b32 v31, v29
    s_nop 1
    v_permlane32_swap_b32 v30, v28
    v_permlane32_swap_b32 v31, v29
    v_add_f32 v28, v28, v30
    v_add_f32 v29, v29, v31
    v_mov_b32 v30, v28
    v_mov_b32 v31, v29
    s_nop 1
    v_permlane16_swap_b32 v30, v28
    v_permlane16_swap_b32 v31, v29
    v_add_f32 v28, v28, v30
    v_add_f32 v29, v29, v31
    s_mov_b32 exec_lo, 0xffff
    s_mov_b32 exec_hi, 0
    buffer_store_dwordx2 v[28:29], v22, {R(SWS)}, s52 offen {STF}
    s_mov_b64 exec, -1
    """)
    A.st("p3st")
    for r in range(8): A(f"v_cvt_pk_bf16_f32 v{XR+r}, v{ACC+2*r}, v{ACC+2*r+1}")
    A("""
    s_waitcnt vmcnt(0)
    s_barrier
    """)
    A.st("p3drain")
    A(f"""
    s_cmp_lg_u32 s{sW}, 0
    s_cbranch_scc1 {L('sum')}
    s_lshl_b32 s15, s{sRT64}, 3
    s_add_u32 s15, s15, s{sCT8}
    """)
    signal(A, 1, 15, 200)
    A(f"s_branch {L('done')}")
    A.label(L('sum'))
    for k in range(1, 20): A(f"v_add_f32 v{PC}, v{PC}, v{PC+k}")
    A(f"ds_write_b32 v10, v{PC} offset:{CS_LDS}")
    A("s_waitcnt lgkmcnt(0)")
    A.label(L('done'))

def gen_p4(A):
    L = lambda x: f"L4_{x}"
    vL16 = 2
    A(f"s_cmp_lt_u32 s{sW}, 4")
    A(f"s_cbranch_scc1 {L('compute')}")
    sMH = 47
    A(f"""
    s_lshl_b32 s3, s{sRT128}, 2
    s_add_u32 s3, s3, s{sNT}
    s_mul_i32 s3, s3, 40960
    s_add_u32 s3, s3, {WS_H}
    v_add_u32 v5, s3, v{vL16}
    s_lshl_b32 s{sMH}, s{sNT}, 11
    s_barrier
    """)
    def issueH(c):
        for ksl in range(2):
            for t in range(2):
                A(f"s_add_u32 m0, s{sMH}, {(c%4)*SLOT4 + ksl*8192 + t*1024}")
                A(f"s_add_u32 s3, s48, {t*20480 + ksl*1024}")
                A(f"buffer_load_dwordx4 v5, {R(SWS)}, s3 offen {LDF} lds")
        A(f"""
        s_add_u32 s48, s48, 2048
        s_cmp_eq_u32 s48, 20480
        s_cmov_b32 s48, 0
        """)
    H0 = int(os.environ.get("H0", "1"))
    q = []
    for c in range(H0): issueH(c); q += [c]*4
    A(f"""
    s_mul_i32 s50, s{sNT}, 10240
    s_lshr_b32 s3, s{sNT}, 1
    s_mul_i32 s3, s3, {24*5120}
    s_and_b32 s14, s{sNT}, 1
    s_mul_i32 s14, s14, 10240
    s_add_u32 s3, s3, s14
    s_mul_i32 s14, s{sCT8}, 245760
    s_add_u32 s3, s3, s14
    s_add_u32 s3, s3, {WS_WD}
    v_add_u32 v6, s3, v{vL16}
    """)
    for c in range(11):
        if c < 10:
            n = len(q) - 1 - max(k for k, e in enumerate(q) if e == c)
            A(f"s_waitcnt vmcnt({n})")
        A("s_barrier")
        if c == 0:
            for cc in range(H0, 4):
                issueH(cc); q += [cc]*4
                if cc >= sum(W3): issueW4(A, cc); q += [cc]*6
        if 1 <= c <= 6:
            issueH(c+3); issueW4(A, c+3); q += [c+3]*10
        if c >= 7:
            issueD(A, c - 7); q += [-1]*10
        if c < 10 and "nowr" not in OPT:
            k = 2*c
            A(f"s_mov_b32 s3, {(4 + k//10)*20480 + (k%10)*1024}")
            for kk in range(2):
                A(f"buffer_load_dwordx4 {v(WR+4*(k+kk),4)}, v6, {R(SWS)}, s3 offen offset:{kk*1024} {LDF}")
            q += [-1]*2
    A(f"s_branch {L('done')}")
    A.label(L('compute'))
    sWR, sWC = 45, 46
    vHB, vHC, vWBs, vWC_ = 4, 5, 6, 7
    HF = 16; WA = 48; WB = 60; ACC = 96; STR = 192
    A(f"""
    s_lshr_b32 s{sWR}, s{sW}, 1
    s_and_b32 s{sWC}, s{sW}, 1
    s_lshl_b32 s3, s{sWR}, 12
    v_add_u32 v{vHB}, s3, v{vL16}
    s_mul_i32 s3, s{sWC}, 3072
    s_add_u32 s3, s3, 16384
    v_add_u32 v{vWBs}, s3, v{vL16}
    v_lshrrev_b32 v10, 4, v0
    v_and_b32 v11, 15, v0
    s_lshl_b32 s15, s{sRT128}, 1
    s_add_u32 s15, s15, s{sWR}
    s_lshl_b32 s15, s15, 12
    s_add_u32 s15, s15, {WS_ST}
    v_lshlrev_b32 v12, 8, v10
    v_lshl_add_u32 v12, v11, 3, v12
    s_mov_b32 s47, s15
    s_cmp_lg_u32 s{sW}, 0
    s_cbranch_scc1 {L('nopoll')}
    s_lshl_b32 s15, s{sRT128}, 4
    """)
    waitfl(A, 1, 15, 16, 200)
    A.label(L('nopoll'))
    A("s_barrier")
    A.st("s3")
    for m in range(2):
        for mt in range(3):
            A(f"ds_read_b128 {v(CS+12*m+4*mt,4)}, v9 offset:{m*384 + mt*64}")
    for nt in range(4):
        for u in range(2):
            A(f"buffer_load_dwordx2 {v(STR+4*nt+2*u,2)}, v12, {R(SWS)}, s47 offen offset:{nt*1024 + u*128} {LDF}")
    def setaddr(c):
        A(f"v_add_u32 v{vHC}, {(c%4)*SLOT4}, v{vHB}")
        A(f"v_add_u32 v{vWC_}, {(c%4)*SLOT4}, v{vWBs}")
    def rdH(ksl, f): return [f"ds_read_b128 {v(HF+16*f+4*nt,4)}, v{vHC} offset:{ksl*8192 + nt*1024}" for nt in range(4)]
    def rdW(ksl, m): return [f"ds_read_b128 {v((WB if m else WA)+4*mt,4)}, v{vWC_} offset:{ksl*12288 + m*6144 + mt*1024}" for mt in range(3)]
    def mf(m, f, first, r):
        b = WB if m else WA
        k = 0
        for mt in range(3):
            for nt in range(4):
                acc = v(ACC + 48*m + 16*mt + 4*nt, 4)
                A(f"v_mfma_f32_16x16x32_bf16 {acc}, {v(b+4*mt,4)}, {v(HF+16*f+4*nt,4)}, {'0' if first else acc}")
                if k < len(r): A(r[k])
                k += 1
    X = []
    for nt in range(4):
        X += [f"v_add_f32 v{STR+4*nt}, v{STR+4*nt}, v{STR+4*nt+2}", f"v_add_f32 v{STR+4*nt+1}, v{STR+4*nt+1}, v{STR+4*nt+3}"]
    for sw in ("v_permlane32_swap_b32", "v_permlane16_swap_b32"):
        for nt in range(4): X += [f"v_mov_b32 v{STR+4*nt+2}, v{STR+4*nt}", f"v_mov_b32 v{STR+4*nt+3}, v{STR+4*nt+1}"]
        for nt in range(4): X += [f"{sw} v{STR+4*nt+2}, v{STR+4*nt}", f"{sw} v{STR+4*nt+3}, v{STR+4*nt+1}"]
        for nt in range(4): X += [f"v_add_f32 v{STR+4*nt}, v{STR+4*nt}, v{STR+4*nt+2}", f"v_add_f32 v{STR+4*nt+1}, v{STR+4*nt+1}, v{STR+4*nt+3}"]
    for nt in range(4):
        b = STR + 4*nt
        X += [f"v_mul_f32 v{b}, {hex(f32bits(1.0/640))}, v{b}", f"v_mul_f32 v{b+1}, {hex(f32bits(1.0/640))}, v{b+1}",
              f"v_fma_f32 v{b+1}, -v{b}, v{b}, v{b+1}", f"v_max_f32 v{b+1}, 0, v{b+1}",
              f"v_add_f32 v{b+1}, {hex(f32bits(1e-5))}, v{b+1}", f"v_rcp_f32 v{b+1}, v{b+1}"]
    A(f"""
    s_lshl_b32 s3, s{sRT128}, 3
    s_lshl_b32 s14, s{sWR}, 2
    s_add_u32 s3, s3, s14
    s_mul_i32 s3, s3, 49152
    s_mul_i32 s14, s{sCT16}, 3072
    s_add_u32 s3, s3, s14
    s_mul_i32 s14, s{sWC}, 1536
    s_add_u32 s3, s3, s14
    s_add_u32 s48, s3, {WS_G}
    s_add_u32 s49, s48, {2*49152}
    v_and_b32 v14, 1, v10
    v_mul_u32_u24 v14, 49152, v14
    v_lshrrev_b32 v13, 1, v10
    v_lshl_add_u32 v14, v13, 8, v14
    v_lshl_add_u32 v14, v11, 4, v14
    """)
    def epi(mt):
        E = []
        for p in range(2):
            for q in range(2):
                nt = 2*p + q
                g = ACC + 16*mt + 4*nt; u = g + 48
                for j in (0, 2):
                    E.append(f"v_pk_fma_f32 {v(g+j,2)}, {v(STR+4*nt,2)}, {v(CS+4*mt+j,2)}, {v(g+j,2)} op_sel_hi:[0,1,1] neg_lo:[1,0,0] neg_hi:[1,0,0]")
                for j in range(4): E.append(f"v_max_f32 v{g+j}, 0, v{g+j}")
                for j in (0, 2):
                    E.append(f"v_pk_mul_f32 {v(g+j,2)}, {v(STR+4*nt,2)}, {v(g+j,2)} op_sel:[1,0] op_sel_hi:[1,1]")
            for q in range(2):
                nt = 2*p + q
                g = ACC + 16*mt + 4*nt; u = g + 48
                for j in (0, 2):
                    E.append(f"v_pk_fma_f32 {v(u+j,2)}, {v(STR+4*nt,2)}, {v(CS+12+4*mt+j,2)}, {v(u+j,2)} op_sel_hi:[0,1,1] neg_lo:[1,0,0] neg_hi:[1,0,0]")
                for j in (0, 2): E.append(f"v_pk_mul_f32 {v(u+j,2)}, {v(g+j,2)}, {v(u+j,2)}")
            g0 = ACC + 16*mt + 8*p; u0 = g0 + 48
            for k in range(4): E.append(f"v_cvt_pk_bf16_f32 v{g0+k}, v{u0+2*k}, v{u0+2*k+1}")
            if "4" in SENT:
                for k in range(4): E.append(f"v_min_u32 v{g0+k}, -2, v{g0+k}")
            E += ["s_nop 0", f"v_permlane16_swap_b32 v{g0}, v{g0+2}", f"v_permlane16_swap_b32 v{g0+1}, v{g0+3}",
                  f"buffer_store_dwordx4 {v(g0,4)}, v14, {R(SWS)}, s{49 if p else 48} offen offset:{mt*512} {STF}"]
        return E
    def take(n):
        r = X[:n]; del X[:n]; return r
    setaddr(0)
    A("s_waitcnt vmcnt(0) lgkmcnt(0)")
    for k, x in enumerate(X):
        if "swap" in x and "swap" not in X[k-1]: A("s_nop 0")
        A(x)
    X = []
    A("s_barrier")
    A.st("p4b0")
    for x in rdH(0, 0) + rdW(0, 0): A(x)
    for c in range(9):
        ex = (c >= 2)
        A("s_waitcnt lgkmcnt(0)")
        mf(0, 0, c == 0, rdW(0, 1) + rdH(1, 1) + (take(5) if ex else []))
        A("s_waitcnt lgkmcnt(4)")
        mf(1, 0, c == 0, rdW(1, 0) + (take(9) if ex else []))
        A("s_waitcnt lgkmcnt(0)")
        mf(0, 1, False, rdW(1, 1) + (take(9) if ex else []))
        A("s_waitcnt lgkmcnt(0)")
        setaddr(c+1)
        A("s_barrier")
        mf(1, 1, False, rdW(0, 0) + rdH(0, 0) + (take(5) if ex else []))
    assert not X
    WC2, WD2 = 72, 84
    r2 = rdW(0, 1) + rdH(1, 1) + [f"ds_read_b128 {v((WD2 if m else WC2)+4*mt,4)}, v{vWC_} offset:{12288 + m*6144 + mt*1024}" for mt in range(3) for m in range(2)]
    A("s_waitcnt lgkmcnt(0)")
    A(r2.pop(0))
    mf(0, 0, False, r2)
    A("s_waitcnt lgkmcnt(0)")
    A("s_barrier")
    prev = []
    OV = os.environ.get("OV4", "alt")
    for mt in range(3):
        M = []
        for (m, wb, f) in ((0, WC2, 1), (1, WB, 0), (1, WD2, 1)):
            for nt in range(4):
                acc = v(ACC + 48*m + 16*mt + 4*nt, 4)
                M.append(f"v_mfma_f32_16x16x32_bf16 {acc}, {v(wb+4*mt,4)}, {v(HF+16*f+4*nt,4)}, {acc}")
        if OV == "weave":
            for k, x in enumerate(M):
                A(x)
                for y in prev[(k*len(prev))//12:((k+1)*len(prev))//12]: A(y)
            prev = epi(mt)
        elif OV == "alt":
            for x in M: A(x)
            for y in epi(mt): A(y)
        else:
            for x in M: A(x)
            prev += epi(mt)
    A.st("p4end")
    for y in prev: A(y)
    A.st("p4st")
    if "4" not in SENT:
        A("s_waitcnt vmcnt(0)")
        A("s_barrier")
    A.st("p4drain")
    A.label(L('done'))

def gen_p5(A):
    L = lambda x: f"L5_{x}"
    vL16 = 2
    vWB, vWC = 4, 5
    LA = int(os.environ.get("LA", "6"))
    NG = LA + 1
    GF = 32
    WF = GF + 8*NG
    ACC = WF + 40
    assert ACC + 40 <= XR
    sG0, sG1, sKQ = 46, 47, 48
    srd(A, SA, pOUT, X_BYTES)
    PITCH = 336
    A(f"""
    s_lshl_b32 s3, s{sW}, 6
    v_add_u32 v22, s3, v0
    """)
    def item(vi, vl, vg):
        A(f"""
        v_mul_u32_u24 v23, 6554, v{vi}
        v_lshrrev_b32 v23, 16, v23
        v_mul_u32_u24 v24, 10, v23
        v_sub_u32 v24, v{vi}, v24
        v_mul_u32_u24 v{vl}, {PITCH}, v23
        v_lshl_add_u32 v{vl}, v24, 5, v{vl}
        v_mul_u32_u24 v{vg}, 1280, v23
        v_lshl_add_u32 v{vg}, v24, 4, v{vg}
        """)
    item(22, 25, 26)
    A(f"""
    s_mul_i32 s51, s{sRT64}, {64*1280}
    s_mul_i32 s3, s{sCT8}, 160
    s_add_u32 s51, s51, s3
    s_cmp_eq_u32 s{sKH}, 0
    s_cbranch_scc1 {L('compute')}
    v_add_u32 v22, 256, v22
    """)
    item(22, 27, 28)
    if '4' not in SENT:
        A(f"""
        s_lshl_b32 s15, s{sRT128}, 4
        s_add_u32 s15, s15, s{sCT16}
        s_barrier
        s_cmp_lg_u32 s{sW}, 4
        s_cbranch_scc1 {L('nopoll')}
        """)
        signal(A, 2, 15, 200)
        A(f"""
        s_lshr_b32 s15, s{sRT64}, 1
        s_lshl_b32 s15, s15, 4
        """)
        waitfl(A, 2, 15, 16, 200)
        A.label(L('nopoll'))
    A("""
    s_waitcnt vmcnt(0)
    s_barrier
    """)
    A.st("s4")
    if "nowr" in OPT:
        A("s_barrier")
        issueD(A, 4)
        A("s_barrier")
        issueD(A, 5)
        A("""
        s_waitcnt vmcnt(10)
        s_barrier
        s_waitcnt vmcnt(0)
        s_barrier
        """)
    else:
        A(f"s_add_u32 s3, s50, 81920")
        A(f"v_add_u32 v7, s3, v{vL16}")
        for j in range(2):
            A("s_barrier")
            for k in range(10): A(f"ds_write_b128 v7, {v(WR+40*j+4*k,4)} offset:{j*40960 + k*1024}")
        A("""
        s_waitcnt lgkmcnt(0)
        s_barrier
        """)
    A(f"s_branch {L('red')}")
    A.label(L('compute'))
    A(f"""
    s_and_b32 s{sKQ}, s{sW}, 1
    s_lshl_b32 s50, s{sRT64}, 2
    s_add_u32 s{sG0}, s50, s{sNT}
    s_xor_b32 s{sG1}, s{sG0}, 1
    s_mul_i32 s3, s{sKQ}, 24576
    s_add_u32 s3, s3, {WS_G}
    s_mul_i32 s{sG0}, s{sG0}, 49152
    s_mul_i32 s{sG1}, s{sG1}, 49152
    s_add_u32 s58, s{sG0}, s3
    s_add_u32 s96, s{sG1}, s3
    s_add_u32 s59, s58, 4096
    s_add_u32 s60, s58, 8192
    s_add_u32 s61, s58, 12288
    s_add_u32 s62, s58, 16384
    s_add_u32 s63, s58, 20480
    s_add_u32 s97, s96, 4096
    s_add_u32 s98, s96, 8192
    s_add_u32 s99, s96, 12288
    s_add_u32 s100, s96, 16384
    s_add_u32 s101, s96, 20480
    s_mul_i32 s3, s{sKQ}, 20480
    v_add_u32 v{vWB}, s3, v{vL16}
    v_add_u32 v{vWC}, 81920, v{vWB}
    v_and_b32 v20, 15, v0
    v_lshrrev_b32 v21, 4, v0
    s_lshl_b32 s3, s{sKQ}, 2
    s_add_u32 s3, s3, s{sNT}
    s_lshl_b32 s3, s3, 4
    v_add_u32 v20, s3, v20
    v_xor_b32 v19, 16, v20
    v_mul_u32_u24 v20, {PITCH}, v20
    v_lshl_add_u32 v20, v21, 4, v20
    v_mul_u32_u24 v19, {PITCH}, v19
    v_lshl_add_u32 v19, v21, 4, v19
    """)
    for mt in range(5):
        A(f"""
        v_lshlrev_b32 v{ACC+4*mt}, 16, v{XR+2*mt}
        v_and_b32 v{ACC+4*mt+1}, 0xffff0000, v{XR+2*mt}
        v_lshlrev_b32 v{ACC+4*mt+2}, 16, v{XR+2*mt+1}
        v_and_b32 v{ACC+4*mt+3}, 0xffff0000, v{XR+2*mt+1}
        """)
    A("s_barrier")
    A.st("s4")
    def gload(i):
        return [f"buffer_load_dwordx4 {v(GF+8*(i%NG)+4*t,4)}, v{vL16}, {R(SWS)}, s{(96 if t else 58) + i//4} offen offset:{(i%4)*1024} {LDF}" for t in range(2)]
    def chk(i):
        b = GF + 8*(i % NG)
        return [f"v_max3_u32 v30, v{b}, v{b+1}, v{b+2}", f"v_max3_u32 v31, v{b+3}, v{b+4}, v{b+5}",
                f"v_max3_u32 v30, v30, v{b+6}, v{b+7}", "v_max_u32 v30, v30, v31", "v_cmp_eq_u32 vcc, -1, v30"]
    SV = "4" in SENT
    for i in range(LA):
        for x in gload(i): A(x)
    def wreads(i):
        st, ksl = i // 4, i % 4
        return [f"ds_read_b128 {v(WF+20*(i&1)+4*mt,4)}, v{vWB if st in (2, 3) else vWC} offset:{(st&1)*40960 + ksl*5120 + mt*1024}" for mt in range(5)]
    for x in wreads(0): A(x)
    if SV:
        A(f"s_mov_b32 s14, {SPIN}")
        A(f"s_waitcnt vmcnt({2*(LA-1)})")
        for x in chk(0): A(x)
    for i in range(24):
        if SV:
            A(f"s_cbranch_vccnz {L(f'retry{i}')}")
            A.label(L(f'ok{i}'))
            A("s_waitcnt lgkmcnt(0)")
        else:
            A(f"s_waitcnt vmcnt({2*(min(23, i + LA - 1) - i)}) lgkmcnt(0)")
        if i in ((3, 7, 15, 19) if 'nowr' in OPT else (3, 7, 15)): A("s_barrier")
        A.st(f"p5i{i}")
        fill = [[x] for x in (wreads(i+1) if i < 23 else [])]
        g = gload(i + LA) if i + LA < 24 else []
        for k, x in enumerate(g): fill[k].append(x)
        if SV and i < 23:
            c = chk(i + 1)
            fill += [[], [f"s_waitcnt vmcnt({2*(min(23, i + LA) - i - 1)})", c[0]], c[1:3], c[3:5]]
        k = 0
        for t in range(2):
            for mt in range(5):
                acc = v(ACC+20*t+4*mt, 4)
                A(f"v_mfma_f32_16x16x32_bf16 {acc}, {v(WF+20*(i&1)+4*mt,4)}, {v(GF+8*(i%NG)+4*t,4)}, {'0' if (i == 0 and t == 1) else acc}")
                if k < len(fill):
                    for x in fill[k]: A(x)
                k += 1
    def retries():
        for i in range(24):
            A.label(L(f'retry{i}'))
            last = min(23, i + LA - 1)
            A("s_waitcnt vmcnt(0)")
            for j in range(i, last + 1):
                for x in gload(j): A(x)
            A(f"s_waitcnt vmcnt({2*(last - i)})")
            for x in chk(i): A(x)
            A(f"""
            s_cmp_eq_u32 s14, 0
            s_cbranch_scc1 {L(f'ok{i}')}
            s_sub_u32 s14, s14, 1
            s_cbranch_vccnz {L(f'retry{i}')}
            s_branch {L(f'ok{i}')}
            """)
    if SV: A.tail.append(retries)
    A.st("p5end")
    A("s_nop 2")
    for mt in range(5): A(f"ds_write_b128 v20, {v(ACC+4*mt,4)} offset:{mt*64}")
    for mt in range(5): A(f"ds_write_b128 v19, {v(ACC+20+4*mt,4)} offset:{mt*64}")
    A("s_waitcnt lgkmcnt(0)")
    A.label(L('red'))
    A("s_barrier")
    A.st("p5red")
    def fin(vl, vg, b):
        for k in range(2):
            A(f"ds_read_b128 {v(b+8*k,4)}, v{vl} offset:{k*64*PITCH}")
            A(f"ds_read_b128 {v(b+8*k+4,4)}, v{vl} offset:{k*64*PITCH+16}")
        A("s_waitcnt lgkmcnt(0)")
        for j in range(0, 8, 2): A(f"v_pk_add_f32 {v(b+j,2)}, {v(b+j,2)}, {v(b+8+j,2)}")
        for j in range(4): A(f"v_cvt_pk_bf16_f32 v{b+j}, v{b+2*j}, v{b+2*j+1}")
        A(f"buffer_store_dwordx4 {v(b,4)}, v{vg}, {R(SA)}, s51 offen {os.environ.get('OUTF', '')}")
    fin(25, 26, 32)
    A(f"s_sub_u32 s3, s{sW}, 4")
    A(f"s_cmp_ge_u32 s3, 2")
    A(f"s_cbranch_scc1 {L('end')}")
    fin(27, 28, 64)
    A.label(L('end'))
```
